```python
import torch

def _softmax(x, axis=-1):
    return torch.softmax(x, dim=axis)
def _gelu(x):
    return torch.nn.functional.gelu(x, approximate="tanh")
def _silu(x):
    return torch.nn.functional.silu(x)
def _sigmoid(x):
    return torch.sigmoid(x)
def _layernorm(x, axis=-1, eps=1e-5):
    m = x.mean(dim=axis, keepdim=True)
    v = x.var(dim=axis, keepdim=True, unbiased=False)
    return (x - m) / torch.sqrt(v + eps)
def _scatter_add(tgt, idx, src, axis=0):
    return tgt.clone().index_add_(axis, idx, src)
def _segment_sum(src, seg, n):
    out = torch.zeros((n,) + src.shape[1:], dtype=src.dtype)
    return out.index_add_(0, seg, src)
def _pad(x, pw):
    flat = tuple(v for pair in reversed(pw) for v in pair)
    return torch.nn.functional.pad(x, flat)

kernel_name = 'interleave_layers__linear_kernel_hedgehog__mixer_s_mlp__prompt'

def setup_inputs():

    _w = (lambda a: (lambda t: t.to(torch.bfloat16) if t.is_floating_point() else t)(torch.as_tensor(a)))
    def _A_setup():
        B, S, D, H = 1, 2048, 1024, 32
        Dh = D // H
        return {
            "x": _w((lambda *s: torch.randn(*s, dtype=torch.bfloat16) * 0.05)(B, S, D)),
            "wqkv": _w((lambda *s: torch.randn(*s, dtype=torch.bfloat16) * 0.2)(D, 3 * D)),
            "w_phi": _w((lambda *s: torch.randn(*s, dtype=torch.bfloat16) * 0.2)(H, Dh, Dh) * (Dh ** -0.5)),
            "wo": _w((lambda *s: torch.randn(*s, dtype=torch.bfloat16) * 0.05)(D, D)),
        }
    _A_in = _A_setup()

    def _B_setup():
        B, S, D, F = 1, 2048, 1024, 3584
        return {
            "x":  _w((lambda *s: torch.randn(*s, dtype=torch.bfloat16) * 0.05)(B, S, D)),
            "w1": _w((lambda *s: torch.randn(*s, dtype=torch.bfloat16) * 3.2)(D, D) * (D ** -0.5)),
            "w2": _w((lambda *s: torch.randn(*s, dtype=torch.bfloat16) * 3.2)(D, D) * (D ** -0.5)),
            "w3": _w((lambda *s: torch.randn(*s, dtype=torch.bfloat16) * 3.2)(D, F) * (D ** -0.5)),
            "w4": _w((lambda *s: torch.randn(*s, dtype=torch.bfloat16) * 1.6)(F, D) * (F ** -0.5)),
        }
    _B_in = _B_setup()

    return {
        "A_x": _A_in["x"],
        "A_wqkv": _A_in["wqkv"],
        "A_w_phi": _A_in["w_phi"],
        "A_wo": _A_in["wo"],
        "B_x": _B_in["x"],
        "B_w1": _B_in["w1"],
        "B_w2": _B_in["w2"],
        "B_w3": _B_in["w3"],
        "B_w4": _B_in["w4"],
    }

def reference(A_x, A_wqkv, A_w_phi, A_wo, B_x, B_w1, B_w2, B_w3, B_w4):
    def _A_ref(x, wqkv, w_phi, wo):
        B, S, D = x.shape
        H = 32; Dh = D // H
        qkv = (lambda x, *d: x.permute(*d))((x @ wqkv).reshape(B, S, 3, H, Dh), 2, 0, 3, 1, 4)
        q, k, v = qkv[0], qkv[1], qkv[2]
        pq = torch.einsum("bhsd,hdf->bhsf", q, w_phi)
        pk = torch.einsum("bhsd,hdf->bhsf", k, w_phi)
        phi_q = torch.concatenate([_softmax(pq, axis=-1), _softmax(-pq, axis=-1)], axis=-1)
        phi_k = torch.concatenate([_softmax(pk, axis=-1), _softmax(-pk, axis=-1)], axis=-1)
        kv = torch.einsum("bhsf,bhsd->bhfd", phi_k, v)
        z  = torch.einsum("bhsf->bhf", phi_k)
        num = torch.einsum("bhqf,bhfd->bhqd", phi_q, kv)
        den = torch.einsum("bhqf,bhf->bhq", phi_q, z)[..., None] + 1e-6
        o = num / den
        return (lambda x, *d: x.permute(*d))(o, 0, 2, 1, 3).reshape(B, S, D) @ wo

    def _B_ref(x, w1, w2, w3, w4):
        B, S, D = x.shape
        h = _gelu(_layernorm(x, axis=-1) @ w1)
        c = D // 4
        g0 = _pad(h[:, :, 0*c:1*c], ((0, 0), (1, 0), (0, 0)))[:, :S, :]
        g1 = _pad(h[:, :, 1*c:2*c], ((0, 0), (0, 1), (0, 0)))[:, 1:, :]
        g2 = _pad(h[:, :, 2*c:3*c], ((0, 0), (2, 0), (0, 0)))[:, :S, :]
        g3 = _pad(h[:, :, 3*c:   ], ((0, 0), (0, 2), (0, 0)))[:, 2:, :]
        hs = torch.concatenate([g0, g1, g2, g3], axis=-1) @ w2
        x1 = x + hs
        h2 = _gelu(_layernorm(x1, axis=-1) @ w3) @ w4
        return x1 + h2

    x = A_x
    x = x + _A_ref(_layernorm(x, axis=-1), A_wqkv, A_w_phi, A_wo)
    x = x + _B_ref(_layernorm(x, axis=-1), B_w1, B_w2, B_w3, B_w4)
    x = x + _A_ref(_layernorm(x, axis=-1), A_wqkv, A_w_phi, A_wo)
    x = x + _B_ref(_layernorm(x, axis=-1), B_w1, B_w2, B_w3, B_w4)
    return x
```

```python
class K:
    def __init__(self, name, grid, block=256, lds=0):
        self.name = name; self.grid = grid; self.block = block; self.lds = lds
        self.L = []
        self.nv = 0; self.ns = 0
        self.lab = 0
    def __call__(self, s):
        for line in s.strip("\n").split("\n"):
            self.L.append("    " + line.strip())
    def label(self, l):
        self.L.append(f"{l}:")
    def newlabel(self, base):
        self.lab += 1
        return f"L_{self.name}_{base}{self.lab}"
    def text(self):
        o = [f".globl {self.name}", ".p2align 8", f".type {self.name},@function", f"{self.name}:"]
        o += self.L
        o.append("    s_endpgm")
        return "\n".join(o)
    def desc(self, nv, ns=102):
        acc = (nv + 3)//4*4
        return f""".amdhsa_kernel {self.name}
  .amdhsa_next_free_vgpr {nv}
  .amdhsa_next_free_sgpr {ns}
  .amdhsa_accum_offset {acc}
  .amdhsa_group_segment_fixed_size 0
  .amdhsa_kernarg_size 96
  .amdhsa_user_sgpr_count 2
  .amdhsa_user_sgpr_kernarg_segment_ptr 1
  .amdhsa_system_sgpr_workgroup_id_x 1
.end_amdhsa_kernel"""

HEADER = open('interleave_layers__linear_kernel_hedgehog__mixer_s_mlp__prompt.s.ref').read().split("; Override launch")[0]

def build(kernels, launches):
    byname = {k.name: k for k, _ in kernels}
    out = [HEADER.rstrip("\n")]
    for n in launches:
        k = byname[n]
        out.append(f"; @launch kernel={k.name} grid=({k.grid},1,1) block=({k.block},1,1) lds={k.lds}")
    out.append('.amdgcn_target "amdgcn-amd-amdhsa--gfx950"')
    out.append(".text")
    for k, _ in kernels:
        out.append(k.text())
    out.append('.section .rodata,"a"')
    for k, nv in kernels:
        out.append(".p2align 6")
        out.append(k.desc(nv))
    return "\n".join(out) + "\n"
```

```python
from asmlib import K
from gemm import load_ptrs, rne
M=2048; D=1024
PART = 64*32+64

def prologue(k, qkv, extra):
    load_ptrs(k, [(8, qkv, M*3*D*2), (12, (2,0), 32*32*32*2)] + extra)
    k("s_and_b32 s28, s2, 31")
    k("s_lshr_b32 s29, s2, 5")
    k("v_lshrrev_b32 v1, 6, v0"); k("s_nop 0")
    k("v_readfirstlane_b32 s30, v1")
    k("v_mov_b32 v60, v0")
    k("v_and_b32 v0, 63, v0")
    k("v_and_b32 v2, 31, v0")
    k("v_lshrrev_b32 v3, 5, v0")
    k("v_xor_b32 v4, 32, v0"); k("v_lshlrev_b32 v4, 2, v4")
    k("s_lshl_b32 s31, s28, 11")
    k("v_lshlrev_b32 v5, 9, v3")
    k("v_lshlrev_b32 v6, 1, v2")
    k("v_add_u32 v5, v5, v6")
    k("v_add_u32 v5, s31, v5")
    for e in range(16):
        m, j = e//8, e%8
        k(f"buffer_load_ushort v{16+e}, v5, s[12:15], 0 offen offset:{(16*m+j)*64}")
    k("s_waitcnt vmcnt(0)")
    for e in range(8):
        k(f"v_lshl_or_b32 v{8+e}, v{17+2*e}, 16, v{16+2*e}")

def phi(k, colbase_s, rowv):
    k(f"v_lshlrev_b32 v6, 4, v3")
    k(f"v_add_u32 v6, v{rowv}, v6")
    k(f"v_add_u32 v6, {colbase_s}, v6")
    k("buffer_load_dwordx4 v[48:51], v6, s[8:11], 0 offen")
    k("buffer_load_dwordx4 v[52:55], v6, s[8:11], 0 offen offset:32")
    for e in range(16): k(f"v_mov_b32 v{16+e}, 0")
    k("s_waitcnt vmcnt(0)")
    k("v_mfma_f32_32x32x16_bf16 v[16:31], v[8:11], v[48:51], v[16:31]")
    k("v_mfma_f32_32x32x16_bf16 v[16:31], v[12:15], v[52:55], v[16:31]")
    k("s_nop 15"); k("s_nop 3")
    for e in range(16): rne(k, 16+e)
    k("v_mov_b32 v56, v16"); k("v_mov_b32 v57, v16")
    for e in range(1,16):
        k(f"v_max_f32 v56, v56, v{16+e}"); k(f"v_min_f32 v57, v57, v{16+e}")
    k("ds_bpermute_b32 v58, v4, v56"); k("ds_bpermute_b32 v59, v4, v57")
    k("s_waitcnt lgkmcnt(0)")
    k("v_max_f32 v56, v56, v58"); k("v_min_f32 v57, v57, v59")
    k("v_mov_b32 v58, 0"); k("v_mov_b32 v59, 0")
    k("s_mov_b32 s35, 0x3fb8aa3b")
    for e in range(16):
        k(f"v_sub_f32 v{32+e}, v57, v{16+e}")
        k(f"v_sub_f32 v{16+e}, v{16+e}, v56")
        k(f"v_mul_f32 v{32+e}, s35, v{32+e}")
        k(f"v_mul_f32 v{16+e}, s35, v{16+e}")
        k(f"v_exp_f32 v{32+e}, v{32+e}")
        k(f"v_exp_f32 v{16+e}, v{16+e}")
        k("s_nop 0")
        k(f"v_add_f32 v58, v58, v{16+e}"); k(f"v_add_f32 v59, v59, v{32+e}")
    k("ds_bpermute_b32 v56, v4, v58"); k("ds_bpermute_b32 v57, v4, v59")
    k("s_waitcnt lgkmcnt(0)")
    k("v_add_f32 v58, v58, v56"); k("v_add_f32 v59, v59, v57")
    k("v_rcp_f32 v58, v58"); k("v_rcp_f32 v59, v59"); k("s_nop 0")
    for e in range(16):
        k(f"v_mul_f32 v{16+e}, v{16+e}, v58"); k(f"v_mul_f32 v{32+e}, v{32+e}, v59")
        rne(k, 16+e); rne(k, 32+e)

def attn_kv(name, qkv, part):
    k = K(name, 256, 256, lds=4*8448 + 4*6144)
    done = "L_done_"+name
    k("s_cmp_ge_u32 s2, 256"); k(f"s_cbranch_scc1 {done}")
    prologue(k, qkv, [(16, part, 32*8*PART*4)])
    for e in range(64): k(f"v_mov_b32 v{64+e}, 0")
    for e in range(4): k(f"v_mov_b32 v{128+e}, 0x3f803f80")
    TB = 4*8448
    k(f"s_mul_i32 s32, s30, 6144"); k(f"s_add_u32 s32, s32, {TB}")
    for tile in range(2):
        k("s_lshl_b32 s31, s29, 8"); k("s_lshl_b32 s33, s30, 6"); k("s_add_u32 s31, s31, s33")
        k(f"s_add_u32 s31, s31, {tile*32}")
        k(f"s_mul_i32 s33, s31, {3*D*2}")
        k(f"v_mul_u32_u24 v7, {3*D*2}, v2")
        k("v_add_u32 v7, s33, v7")
        k("s_lshl_b32 s34, s28, 6"); k(f"s_add_u32 s34, s34, {D*2}")
        k("v_lshrrev_b32 v61, 2, v0"); k(f"v_mul_u32_u24 v61, {3*D*2}, v61")
        k("v_and_b32 v62, 3, v0"); k("v_lshlrev_b32 v62, 4, v62"); k("v_add_u32 v61, v61, v62")
        k("v_add_u32 v61, s33, v61"); k("s_lshl_b32 s35, s28, 6"); k(f"s_add_u32 s35, s35, {2*D*2}")
        k("v_add_u32 v61, s35, v61")
        k("buffer_load_dwordx4 v[132:135], v61, s[8:11], 0 offen")
        k(f"v_add_u32 v61, {16*3*D*2}, v61")
        k("buffer_load_dwordx4 v[136:139], v61, s[8:11], 0 offen")
        phi(k, "s34", 7)
        k("v_lshlrev_b32 v6, 7, v2"); k("v_lshlrev_b32 v62, 3, v3"); k("v_add_u32 v6, v6, v62")
        k("v_add_u32 v6, s32, v6")
        for sgn in range(2):
            for q in range(4):
                b = 16 + 16*sgn + 4*q
                k(f"v_cvt_pk_bf16_f32 v{b}, v{b}, v{b+1}"); k(f"v_cvt_pk_bf16_f32 v{b+1}, v{b+2}, v{b+3}")
                k(f"ds_write_b64 v6, v[{b}:{b+1}] offset:{sgn*64 + q*16}")
        k("v_lshlrev_b32 v6, 4, v0"); k("v_add_u32 v6, s32, v6")
        k("s_waitcnt vmcnt(0)")
        k("ds_write_b128 v6, v[132:135] offset:4096")
        k("ds_write_b128 v6, v[136:139] offset:5120")
        k("s_waitcnt lgkmcnt(0)")
        k("v_lshlrev_b32 v6, 3, v3"); k("v_bfe_u32 v61, v0, 2, 2"); k("v_add_u32 v6, v6, v61")
        k("v_bfe_u32 v61, v0, 4, 1"); k("v_lshlrev_b32 v61, 4, v61"); k("v_and_b32 v62, 3, v0"); k("v_lshlrev_b32 v62, 2, v62")
        k("v_add_u32 v61, v61, v62"); k("v_lshlrev_b32 v61, 1, v61")
        k("v_lshlrev_b32 v62, 7, v6"); k("v_add_u32 v62, v62, v61"); k("v_add_u32 v62, s32, v62")
        k("v_lshlrev_b32 v63, 6, v6"); k("v_add_u32 v63, v63, v61"); k("v_add_u32 v63, s32, v63")
        for ks in range(2):
            for ft in range(2):
                for h in range(2):
                    k(f"ds_read_b64_tr_b16 v[{16+4*ft+2*h}:{17+4*ft+2*h}], v62 offset:{(16*ks+4*h)*128 + ft*64}")
            for h in range(2):
                k(f"ds_read_b64_tr_b16 v[{24+2*h}:{25+2*h}], v63 offset:{4096 + (16*ks+4*h)*64}")
            k("s_waitcnt lgkmcnt(0)")
            for ft in range(2):
                k(f"v_mfma_f32_32x32x16_bf16 v[{64+16*ft}:{79+16*ft}], v[{16+4*ft}:{19+4*ft}], v[24:27], v[{64+16*ft}:{79+16*ft}]")
                k(f"v_mfma_f32_32x32x16_bf16 v[{96+16*ft}:{111+16*ft}], v[{16+4*ft}:{19+4*ft}], v[128:131], v[{96+16*ft}:{111+16*ft}]")
            k("s_nop 7"); k("s_nop 7")
    k("s_nop 15")
    k(f"s_mul_i32 s32, s30, 8448")
    k("v_lshlrev_b32 v6, 2, v2"); k("v_lshlrev_b32 v7, 9, v3"); k("v_add_u32 v6, v6, v7"); k("v_add_u32 v6, s32, v6")
    k("v_lshlrev_b32 v7, 4, v3"); k("v_add_u32 v7, s32, v7")
    for ft in range(2):
        for r in range(16):
            f = 32*ft + (r&3) + 8*(r>>2)
            k(f"ds_write_b32 v6, v{64+16*ft+r} offset:{f*128}")
            k(f"ds_write_b32 v7, v{96+16*ft+r} offset:{8192 + f*4}")
    k("s_waitcnt lgkmcnt(0)"); k("s_barrier")
    k("v_lshlrev_b32 v6, 2, v60")
    k(f"s_lshl_b32 s31, s28, 3"); k("s_add_u32 s31, s31, s29"); k(f"s_mul_i32 s31, s31, {PART*4}")
    k("v_add_u32 v7, s31, v6")
    for i in range(9):
        guard = (i == 8)
        if guard:
            k("v_cmp_gt_u32 vcc, 64, v60"); k("s_and_saveexec_b64 s[36:37], vcc")
        for w in range(4): k(f"ds_read_b32 v{16+w}, v6 offset:{w*8448 + i*1024}")
        k("s_waitcnt lgkmcnt(0)")
        k("v_add_f32 v16, v16, v17"); k("v_add_f32 v18, v18, v19"); k("v_add_f32 v16, v16, v18")
        k(f"s_mov_b32 s33, {i*1024}")
        k(f"buffer_store_dword v16, v7, s[16:19], s33 offen")
    k.label(done)
    return k, 144

def attn_o(name, qkv, part, Out):
    k = K(name, 256, 256, lds=8448)
    done = "L_done_"+name
    k("s_cmp_ge_u32 s2, 256"); k(f"s_cbranch_scc1 {done}")
    prologue(k, qkv, [(16, part, 32*8*PART*4), (20, Out, M*D*2)])
    k("v_lshlrev_b32 v6, 2, v60")
    k(f"s_mul_i32 s31, s28, {8*PART*4}")
    k("v_add_u32 v7, s31, v6")
    for i in range(9):
        if i == 8:
            k("v_cmp_gt_u32 vcc, 64, v60"); k("s_and_saveexec_b64 s[36:37], vcc")
        for c in range(8):
            k(f"s_mov_b32 s33, {c*PART*4 + i*1024}")
            k(f"buffer_load_dword v{16+c}, v7, s[16:19], s33 offen")
        k("s_waitcnt vmcnt(0)")
        for c in range(1,8): k(f"v_add_f32 v16, v16, v{16+c}")
        rne(k, 16)
        k(f"ds_write_b32 v6, v16 offset:{i*1024}")
    k("s_mov_b64 exec, -1")
    k("s_waitcnt lgkmcnt(0)"); k("s_barrier")
    k("v_lshlrev_b32 v6, 2, v2"); k("v_lshlrev_b32 v7, 9, v3"); k("v_add_u32 v6, v6, v7")
    for e in range(32):
        m, j = e//8, e%8
        f = 16*m + (j&3) + 8*(j>>2)
        k(f"ds_read_b32 v{80+e}, v6 offset:{f*128}")
    k("v_lshlrev_b32 v7, 4, v3")
    for e in range(32):
        m, j = e//8, e%8
        f = 16*m + (j&3) + 8*(j>>2)
        k(f"ds_read_b32 v{112+e}, v7 offset:{8192 + f*4}")
    k("s_waitcnt lgkmcnt(0)")
    for e in range(16): k(f"v_cvt_pk_bf16_f32 v{64+e}, v{80+2*e}, v{81+2*e}")
    for tile in range(2):
        k("s_lshl_b32 s31, s29, 8"); k("s_lshl_b32 s33, s30, 6"); k("s_add_u32 s31, s31, s33")
        k(f"s_add_u32 s31, s31, {tile*32}")
        k(f"s_mul_i32 s33, s31, {3*D*2}")
        k(f"v_mul_u32_u24 v7, {3*D*2}, v2"); k("v_add_u32 v7, s33, v7")
        k("s_lshl_b32 s34, s28, 6")
        phi(k, "s34", 7)
        k("v_mov_b32 v56, 0")
        for e in range(32): k(f"v_fmac_f32 v56, v{16+e}, v{112+e}")
        k("ds_bpermute_b32 v57, v4, v56")
        for e in range(16): k(f"v_cvt_pk_bf16_f32 v{80+e}, v{16+2*e}, v{17+2*e}")
        for e in range(16): k(f"v_mov_b32 v{16+e}, 0")
        k("s_waitcnt lgkmcnt(0)")
        k("v_add_f32 v56, v56, v57"); rne(k, 56)
        k("v_add_f32 v56, 0x358637bd, v56"); rne(k, 56)
        k("v_rcp_f32 v56, v56")
        for m in range(4):
            k(f"v_mfma_f32_32x32x16_bf16 v[16:31], v[{64+4*m}:{67+4*m}], v[{80+4*m}:{83+4*m}], v[16:31]")
        k("s_nop 15"); k("s_nop 3")
        k("s_lshl_b32 s33, s31, 11"); k("v_lshlrev_b32 v6, 11, v2"); k("v_add_u32 v6, s33, v6")
        k("v_lshlrev_b32 v7, 3, v3"); k("v_add_u32 v6, v6, v7"); k("v_add_u32 v6, s34, v6")
        for q in range(4):
            x = 16+4*q
            for e in range(4):
                rne(k, x+e); k(f"v_mul_f32 v{x+e}, v{x+e}, v56")
            k(f"v_cvt_pk_bf16_f32 v{x}, v{x}, v{x+1}"); k(f"v_cvt_pk_bf16_f32 v{x+1}, v{x+2}, v{x+3}")
            k(f"buffer_store_dwordx2 v[{x}:{x+1}], v6, s[20:23], 0 offen offset:{q*16}")
        k("s_nop 3")
    k.label(done)
    return k, 144
```

```python
from asmlib import K

M = 2048
BM = 128
BK = 64

def load_ptrs(k, bufs):
    idxs = sorted(set(b[1][0] for b in bufs))
    reg = {}
    for i, idx in enumerate(idxs):
        reg[idx] = 40 + 2*i
        k(f"s_load_dwordx2 s[{40+2*i}:{41+2*i}], s[0:1], {idx*8}")
    k("s_waitcnt lgkmcnt(0)")
    for q, (idx, off), nb in bufs:
        r = reg[idx]
        if off:
            k(f"s_add_u32 s{q}, s{r}, {off}")
            k(f"s_addc_u32 s{q+1}, s{r+1}, 0")
        else:
            k(f"s_mov_b32 s{q}, s{r}")
            k(f"s_mov_b32 s{q+1}, s{r+1}")
        k(f"s_mov_b32 s{q+2}, {nb}")
        k(f"s_mov_b32 s{q+3}, 0x00020000")

def gelu_code(k, x, t):
    k(f"v_mul_f32 v{t}, v{x}, v{x}")
    k(f"v_fma_f32 v{t}, v{t}, s36, 1.0")
    k(f"v_mul_f32 v{t}, v{t}, v{x}")
    k(f"v_mul_f32 v{t}, s37, v{t}")
    k(f"v_exp_f32 v{t}, v{t}")
    k(f"s_nop 0")
    k(f"v_add_f32 v{t}, 1.0, v{t}")
    k(f"v_rcp_f32 v{t}, v{t}")
    k(f"s_nop 0")
    k(f"v_mul_f32 v{x}, v{x}, v{t}")

def rne(k, x):
    k(f"v_cvt_pk_bf16_f32 v{x}, v{x}, v{x}")
    k(f"v_lshlrev_b32 v{x}, 16, v{x}")

def gemm(name, A, W, Out, N, Kd, BN, epi, R1=None, R2=None, shift=False, abytes=None):
    WM, WN = (2, 2) if BN in (64, 128, 192) else (4, 1)
    TM = BM // WM // 32
    TN = BN // WN // 32
    U = BN // 8
    nIB = BN // 32
    swzB = (BN % 64 == 0)
    ASZ = BM*BK*2; BSZ = BK*BN*2
    ABASE = 0; BBASE = 2*ASZ
    k = K(name, 256, 256, lds=2*ASZ + 2*BSZ)
    NIT = Kd // BK
    done = "L_done_" + name
    k(f"s_cmp_ge_u32 s2, 256")
    k(f"s_cbranch_scc1 {done}")
    a_off = A[1] - (2*Kd*2 if shift else 0)
    bufs = [(8, (A[0], a_off), (abytes or M*Kd*2) + (4*Kd*2 if shift else 0)), (12, (W, 0), Kd*N*2), (16, Out, M*N*2)]
    if R1: bufs.append((20, R1, M*N*2))
    if R2: bufs.append((24, R2, M*N*2))
    load_ptrs(k, bufs)
    k("s_mov_b32 s36, 0x3d372713")
    import struct, math
    c = -2*math.sqrt(2/math.pi)*math.log2(math.e)
    k(f"s_mov_b32 s37, 0x{struct.unpack('<I', struct.pack('<f', c))[0]:08x}")
    k("s_lshr_b32 s28, s2, 4")
    k("s_and_b32 s29, s2, 15")
    k("v_lshrrev_b32 v1, 6, v0")
    k("s_nop 0")
    k("v_readfirstlane_b32 s30, v1")
    k("v_and_b32 v0, 63, v0")
    k("v_lshrrev_b32 v1, 3, v0")
    k("s_lshl_b32 s31, s30, 5")
    k(f"s_lshl_b32 s34, s28, 7")
    k("s_add_u32 s31, s31, s34")
    k("v_add_u32 v1, s31, v1")
    for j in range(4):
        k(f"v_add_u32 v6, {8*j}, v1")
        k("v_lshrrev_b32 v7, 1, v6")
        k("v_and_b32 v7, 7, v7")
        k("v_and_b32 v8, 7, v0")
        k("v_xor_b32 v7, v7, v8")
        k("v_lshlrev_b32 v7, 4, v7")
        k(f"s_mov_b32 s35, {Kd*2}")
        k(f"v_mul_lo_u32 v6, v6, s35")
        k(f"v_add_u32 v{2+j}, v6, v7")
    magic = -(-65536 // U)
    for L in range(64*U + 64):
        assert (L*magic) >> 16 == L // U
    k(f"s_mul_i32 s31, s30, {nIB*64}")
    k(f"s_mul_i32 s34, s29, {BN*2}")
    for j in range(nIB):
        k(f"v_add_u32 v6, s31, v0")
        k(f"v_add_u32 v6, {64*j}, v6")
        k(f"v_mul_u32_u24 v7, {magic}, v6")
        k(f"v_lshrrev_b32 v7, 16, v7")
        k(f"v_mul_u32_u24 v8, {U}, v7")
        k(f"v_sub_u32 v8, v6, v8")
        if swzB:
            k("v_lshlrev_b32 v9, 1, v7")
            k("v_and_b32 v9, 4, v9")
            k("v_xor_b32 v8, v8, v9")
        k("v_lshlrev_b32 v8, 4, v8")
        k(f"s_mov_b32 s35, {N*2}")
        k("v_mul_lo_u32 v7, v7, s35")
        k("v_add_u32 v7, v7, v8")
        k(f"v_add_u32 v{10+j}, s34, v7")
    if WN == 2:
        k("s_lshr_b32 s31, s30, 1"); k("s_and_b32 s34, s30, 1")
    else:
        k("s_mov_b32 s31, s30"); k("s_mov_b32 s34, 0")
    k(f"s_mul_i32 s38, s31, {TM*32}")
    k(f"s_mul_i32 s39, s34, {TN*32}")
    k("v_and_b32 v6, 31, v0")
    k("v_add_u32 v6, s38, v6")
    k("v_lshrrev_b32 v7, 1, v6")
    k("v_and_b32 v7, 7, v7")
    k("v_lshrrev_b32 v8, 5, v0")
    k("v_xor_b32 v7, v7, v8")
    k("v_lshlrev_b32 v7, 4, v7")
    k("v_lshlrev_b32 v6, 7, v6")
    k("v_add_u32 v6, v6, v7")
    for ks in range(4):
        k(f"v_xor_b32 v{20+ks}, {ks*32}, v6")
    k("v_lshrrev_b32 v6, 5, v0")
    k("v_lshlrev_b32 v6, 3, v6")
    k("v_bfe_u32 v7, v0, 2, 2")
    k("v_add_u32 v6, v6, v7")
    k("v_bfe_u32 v8, v0, 4, 1")
    k("v_lshlrev_b32 v8, 4, v8")
    k("v_and_b32 v9, 3, v0")
    k("v_lshlrev_b32 v9, 2, v9")
    k("v_add_u32 v8, v8, v9")
    k("v_add_u32 v8, s39, v8")
    nBaddr = TN if swzB else 1
    for t in range(nBaddr):
        k(f"v_add_u32 v9, {32*t}, v8")
        k("v_lshlrev_b32 v9, 1, v9")
        if swzB:
            k("v_lshlrev_b32 v18, 5, v7")
            k("v_and_b32 v18, 64, v18")
            k("v_xor_b32 v9, v9, v18")
        k(f"v_mul_u32_u24 v19, {BN*2}, v6")
        k(f"v_add_u32 v{24+t}, v19, v9")
        k(f"v_add_u32 v{24+t}, {BBASE}, v{24+t}")
    ACC = 32
    nacc = TM*TN*16
    for i in range(nacc):
        k(f"v_mov_b32 v{ACC+i}, 0")
    FR = ACC + nacc
    FS = (TM+TN)*4
    NV = FR + 2*FS + 8
    TMP = FR + 2*FS
    k(f"s_lshl_b32 s40, s30, 12")
    k(f"s_mul_i32 s41, s30, {nIB*1024}")
    k(f"s_add_u32 s41, s41, {BBASE}")
    k("s_mov_b32 s32, 0"); k("s_mov_b32 s33, 0")
    def shift_soff(it):
        g = (it*BK)//256
        return {0: -1, 1: 1, 2: -2, 3: 2}[g]
    def dma(stage):
        for j in range(4):
            k(f"s_add_u32 m0, s40, {stage*ASZ + j*1024}")
            k("s_nop 0")
            k(f"buffer_load_dwordx4 v{2+j}, s[8:11], s32 offen lds")
        for j in range(nIB):
            k(f"s_add_u32 m0, s41, {stage*BSZ + j*1024}")
            k("s_nop 0")
            k(f"buffer_load_dwordx4 v{10+j}, s[12:15], s33 offen lds")
    if shift:
        k(f"s_mov_b32 s32, {(2-1)*Kd*2}")
    dma(0)
    def reads(stage, ks, fs):
        b = FR + fs*FS
        n = 0
        for i in range(TM):
            k(f"ds_read_b128 v[{b+4*i}:{b+4*i+3}], v{20+ks} offset:{ABASE + stage*ASZ + i*4096}")
            n += 1
        for t in range(TN):
            for h in range(2):
                off = stage*BSZ + (16*ks + 4*h)*BN*2 + (0 if swzB else t*64)
                a = 24 + (t if swzB else 0)
                r = b + 4*TM + 4*t + 2*h
                k(f"ds_read_b64_tr_b16 v[{r}:{r+1}], v{a} offset:{off}")
                n += 1
        return n
    def mfmas(fs):
        b = FR + fs*FS
        for i in range(TM):
            for t in range(TN):
                a = ACC + (i*TN + t)*16
                k(f"v_mfma_f32_32x32x16_bf16 v[{a}:{a+15}], v[{b+4*TM+4*t}:{b+4*TM+4*t+3}], v[{b+4*i}:{b+4*i+3}], v[{a}:{a+15}]")
    nrd = TM + 2*TN
    k("s_mov_b32 s31, 0")
    loop = "L_loop_" + name
    k.label(loop)
    for stage in range(2):
        k("s_waitcnt vmcnt(0)")
        k("s_barrier")
        k(f"s_add_u32 s32, s32, {BK*2}")
        k(f"s_add_u32 s33, s33, {BK*N*2}")
        skip = k.newlabel("skip")
        if shift:
            k(f"s_add_u32 s35, s31, {stage+1}")
            k(f"s_lshr_b32 s34, s35, 2")
            k(f"s_lshl_b32 s35, s35, 7")
            k("s_mov_b32 s39, 0x04000301")
            k("s_lshl_b32 s34, s34, 3")
            k("s_lshr_b32 s39, s39, s34")
            k("s_and_b32 s39, s39, 0xff")
            k(f"s_mul_i32 s39, s39, {Kd*2}")
            k("s_add_u32 s32, s35, s39")
        k(f"s_cmp_ge_u32 s31, {NIT - 1 - stage}")
        k(f"s_cbranch_scc1 {skip}")
        dma(1 - stage)
        k.label(skip)
        reads(stage, 0, 0)
        for ks in range(4):
            if ks < 3:
                reads(stage, ks+1, (ks+1) & 1)
                k(f"s_waitcnt lgkmcnt({nrd})")
            else:
                k("s_waitcnt lgkmcnt(0)")
            mfmas(ks & 1)
    k("s_add_u32 s31, s31, 2")
    k(f"s_cmp_lt_u32 s31, {NIT}")
    k(f"s_cbranch_scc1 {loop}")
    k("s_nop 15"); k("s_nop 7")
    if WN == 2:
        k("s_lshr_b32 s31, s30, 1"); k("s_and_b32 s34, s30, 1")
    else:
        k("s_mov_b32 s31, s30"); k("s_mov_b32 s34, 0")
    k(f"s_mul_i32 s38, s31, {TM*32}")
    k(f"s_mul_i32 s39, s34, {TN*32}")
    k(f"s_lshl_b32 s31, s28, 7"); k("s_add_u32 s38, s38, s31")
    k(f"s_mul_i32 s31, s29, {BN}"); k("s_add_u32 s39, s39, s31")
    k("v_and_b32 v1, 31, v0")
    k("v_add_u32 v1, s38, v1")
    k(f"s_mov_b32 s35, {N*2}")
    k("v_mul_lo_u32 v1, v1, s35")
    k("v_lshrrev_b32 v2, 5, v0")
    k("v_lshlrev_b32 v2, 3, v2")
    k("v_add_u32 v1, v1, v2")
    k("s_lshl_b32 s39, s39, 1")
    k("v_add_u32 v1, s39, v1")
    T = TMP
    for i in range(TM):
        if i:
            k(f"v_add_u32 v1, {32*N*2}, v1")
        for t in range(TN):
            a = ACC + (i*TN + t)*16
            for q in range(4):
                off = (32*t + 8*q)*2
                x = a + 4*q
                if R1:
                    k(f"buffer_load_dwordx2 v[{T}:{T+1}], v1, s[20:23], 0 offen offset:{off}")
                if R2:
                    k(f"buffer_load_dwordx2 v[{T+2}:{T+3}], v1, s[24:27], 0 offen offset:{off}")
                if epi in ("gelu",) or R1:
                    for e in range(4): rne(k, x+e)
                if epi == "gelu":
                    for e in range(4): gelu_code(k, x+e, T+4)
                if R1:
                    k("s_waitcnt vmcnt(%d)" % (1 if R2 else 0))
                    for e in range(4):
                        src = T + e//2
                        if e % 2 == 0: k(f"v_lshlrev_b32 v{T+4}, 16, v{src}")
                        else: k(f"v_and_b32 v{T+4}, 0xffff0000, v{src}")
                        k(f"v_add_f32 v{x+e}, v{x+e}, v{T+4}")
                if R2:
                    for e in range(4): rne(k, x+e)
                    k("s_waitcnt vmcnt(0)")
                    for e in range(4):
                        src = T + 2 + e//2
                        if e % 2 == 0: k(f"v_lshlrev_b32 v{T+4}, 16, v{src}")
                        else: k(f"v_and_b32 v{T+4}, 0xffff0000, v{src}")
                        k(f"v_add_f32 v{x+e}, v{x+e}, v{T+4}")
                k(f"v_cvt_pk_bf16_f32 v{x}, v{x}, v{x+1}")
                k(f"v_cvt_pk_bf16_f32 v{x+1}, v{x+2}, v{x+3}")
                k(f"buffer_store_dwordx2 v[{x}:{x+1}], v1, s[16:19], 0 offen offset:{off}")
    k.label(done)
    return k, NV
```

```python
from asmlib import K
from gemm import load_ptrs, rne
M=2048; D=1024

def wave_sum(k, x, t):
    for off in (0x041F, 0x081F, 0x101F, 0x201F, 0x401F):
        k(f"ds_swizzle_b32 v{t}, v{x} offset:0x{off:04X}")
        k("s_waitcnt lgkmcnt(0)")
        k(f"v_add_f32 v{x}, v{x}, v{t}")
    k("s_nop 0")
    k(f"v_readlane_b32 s30, v{x}, 32")
    k(f"v_readlane_b32 s31, v{x}, 0")
    k("s_nop 1")
    k(f"v_mov_b32 v{x}, s30")
    k(f"v_add_f32 v{x}, s31, v{x}")

def ln_core(k, X):
    k(f"v_mov_b32 v4, 0")
    for e in range(16): k(f"v_add_f32 v4, v4, v{X+e}")
    wave_sum(k, 4, 5)
    k(f"v_mul_f32 v4, 0x3a800000, v4")
    k(f"v_mov_b32 v6, 0")
    for e in range(16):
        k(f"v_sub_f32 v{X+e}, v{X+e}, v4")
        k(f"v_fmac_f32 v6, v{X+e}, v{X+e}")
    wave_sum(k, 6, 5)
    k("v_mov_b32 v5, 0x3727c5ac")
    k("v_fmac_f32 v5, 0x3a800000, v6")
    k("v_rsq_f32 v5, v5")
    k("s_nop 0")
    for e in range(16): k(f"v_mul_f32 v{X+e}, v{X+e}, v5")

def pack_store(k, X, srd):
    for e in range(8):
        k(f"v_cvt_pk_bf16_f32 v{X+16+e}, v{X+2*e}, v{X+2*e+1}")
    k(f"buffer_store_dwordx4 v[{X+16}:{X+19}], v1, s[{srd}:{srd+3}], 0 offen")
    k(f"buffer_store_dwordx4 v[{X+20}:{X+23}], v1, s[{srd}:{srd+3}], 0 offen offset:1024")

def ln(name, In, Out1, Out2=None, Pad=None):
    k = K(name, 512, 256)
    done = "L_done_"+name
    k("s_cmp_ge_u32 s2, 512"); k(f"s_cbranch_scc1 {done}")
    bufs = [(8, In, M*D*2), (12, Out1, M*D*2)]
    if Out2: bufs.append((16, Out2, M*D*2))
    if Pad: bufs.append((20, Pad, (M+4)*D*2))
    load_ptrs(k, bufs)
    k("s_lshl_b32 s3, s2, 2")
    k("v_lshrrev_b32 v1, 6, v0")
    k("v_add_u32 v1, s3, v1")
    k("v_lshlrev_b32 v1, 11, v1")
    k("v_and_b32 v2, 63, v0")
    k("v_lshlrev_b32 v2, 4, v2")
    k("v_add_u32 v1, v1, v2")
    X = 16
    k(f"buffer_load_dwordx4 v[8:11], v1, s[8:11], 0 offen")
    k(f"buffer_load_dwordx4 v[12:15], v1, s[8:11], 0 offen offset:1024")
    if Pad:
        sk = k.newlabel("nopad")
        k("s_cmp_lg_u32 s2, 0"); k(f"s_cbranch_scc1 {sk}")
        k("v_lshrrev_b32 v3, 6, v0")
        k("v_and_b32 v4, 2, v3")
        k(f"v_mul_u32_u24 v4, {M//2}, v4")
        k("v_add_u32 v3, v3, v4")
        k("v_lshlrev_b32 v3, 11, v3")
        k("v_add_u32 v3, v3, v2")
        for e in range(4): k(f"v_mov_b32 v{48+e}, 0")
        k("buffer_store_dwordx4 v[48:51], v3, s[20:23], 0 offen")
        k("buffer_store_dwordx4 v[48:51], v3, s[20:23], 0 offen offset:1024")
        k.label(sk)
    k("s_waitcnt vmcnt(0)")
    for e in range(8):
        k(f"v_lshlrev_b32 v{X+2*e}, 16, v{8+e}")
        k(f"v_and_b32 v{X+2*e+1}, 0xffff0000, v{8+e}")
    ln_core(k, X)
    pack_store(k, X, 12)
    if Out2:
        for e in range(16): rne(k, X+e)
        ln_core(k, X)
        k("s_nop 1")
        pack_store(k, X, 16)
    k.label(done)
    return k, 56
```

```python
import sys
from asmlib import build
from gemm import gemm
from small import ln
from attn import attn_kv, attn_o, PART
MB = 1<<20
WS=11; OUT=9
XN=(WS,0); QKV=(WS,4*MB); PARTB=(WS,16*MB); O=(WS,20*MB); X2=(WS,24*MB); XP=(WS,28*MB); XPP=(WS,32*MB)
HPAD=(WS,36*MB); H=(WS,36*MB+4096); X1=(WS,42*MB); X1N=(WS,46*MB); G=(WS,50*MB); X3=(WS,66*MB)
ks=[]; order=[]
def add(kn):
    ks.append(kn); order.append(kn[0].name)
for p in range(2):
    xin = (0,0) if p==0 else X3
    xout = X3 if p==0 else (OUT,0)
    s=f"_{p}_kernel"
    add(ln("lna"+s, xin, XN))
    add(gemm("gqkv"+s, XN, 1, QKV, 3072, 1024, 192, "plain"))
    add(attn_kv("akv"+s, QKV, PARTB))
    add(attn_o("ao"+s, QKV, PARTB, O))
    add(gemm("gwo"+s, O, 3, X2, 1024, 1024, 64, "res", R1=xin))
    add(ln("lnb"+s, X2, XP, XPP, Pad=HPAD))
    add(gemm("gw1"+s, XPP, 5, H, 1024, 1024, 64, "gelu"))
    add(gemm("gw2"+s, H, 6, X1, 1024, 1024, 64, "res", R1=XP, shift=True))
    add(ln("lnc"+s, X1, X1N))
    add(gemm("gw3"+s, X1N, 7, G, 3584, 1024, 256, "gelu", NS=3))
    add(gemm("gw4"+s, G, 8, xout, 1024, 3584, 64, "res", R1=X1, R2=X2))
open(sys.argv[1] if len(sys.argv)>1 else 'interleave_layers__linear_kernel_hedgehog__mixer_s_mlp__prompt.s','w').write(build(ks, order))
```

```python
from asmlib import K
from gemm import load_ptrs, rne
M=2048; D=1024
PART = 64*32+64

def prologue(k, qkv, extra):
    load_ptrs(k, [(8, qkv, M*3*D*2), (12, (2,0), 32*32*32*2)] + extra)
    k("s_and_b32 s28, s2, 31")
    k("s_lshr_b32 s29, s2, 5")
    k("v_lshrrev_b32 v1, 6, v0"); k("s_nop 0")
    k("v_readfirstlane_b32 s30, v1")
    k("v_mov_b32 v60, v0")
    k("v_and_b32 v0, 63, v0")
    k("v_and_b32 v2, 31, v0")
    k("v_lshrrev_b32 v3, 5, v0")
    k("v_xor_b32 v4, 32, v0"); k("v_lshlrev_b32 v4, 2, v4")
    k("s_lshl_b32 s31, s28, 11")
    k("v_lshlrev_b32 v5, 9, v3")
    k("v_lshlrev_b32 v6, 1, v2")
    k("v_add_u32 v5, v5, v6")
    k("v_add_u32 v5, s31, v5")
    for e in range(16):
        m, j = e//8, e%8
        k(f"buffer_load_ushort v{16+e}, v5, s[12:15], 0 offen offset:{(16*m+j)*64}")
    k("s_waitcnt vmcnt(0)")
    for e in range(8):
        k(f"v_lshl_or_b32 v{8+e}, v{17+2*e}, 16, v{16+2*e}")

def phi(k, colbase_s, rowv):
    k(f"v_lshlrev_b32 v6, 4, v3")
    k(f"v_add_u32 v6, v{rowv}, v6")
    k(f"v_add_u32 v6, {colbase_s}, v6")
    k("buffer_load_dwordx4 v[48:51], v6, s[8:11], 0 offen")
    k("buffer_load_dwordx4 v[52:55], v6, s[8:11], 0 offen offset:32")
    for e in range(16): k(f"v_mov_b32 v{16+e}, 0")
    k("s_waitcnt vmcnt(0)")
    k("v_mfma_f32_32x32x16_bf16 v[16:31], v[8:11], v[48:51], v[16:31]")
    k("v_mfma_f32_32x32x16_bf16 v[16:31], v[12:15], v[52:55], v[16:31]")
    k("s_nop 15"); k("s_nop 3")
    for e in range(16): rne(k, 16+e)
    k("v_mov_b32 v56, v16"); k("v_mov_b32 v57, v16")
    for e in range(1,16):
        k(f"v_max_f32 v56, v56, v{16+e}"); k(f"v_min_f32 v57, v57, v{16+e}")
    k("ds_bpermute_b32 v58, v4, v56"); k("ds_bpermute_b32 v59, v4, v57")
    k("s_waitcnt lgkmcnt(0)")
    k("v_max_f32 v56, v56, v58"); k("v_min_f32 v57, v57, v59")
    k("v_mov_b32 v58, 0"); k("v_mov_b32 v59, 0")
    k("s_mov_b32 s35, 0x3fb8aa3b")
    for e in range(16):
        k(f"v_sub_f32 v{32+e}, v57, v{16+e}")
        k(f"v_sub_f32 v{16+e}, v{16+e}, v56")
        k(f"v_mul_f32 v{32+e}, s35, v{32+e}")
        k(f"v_mul_f32 v{16+e}, s35, v{16+e}")
        k(f"v_exp_f32 v{32+e}, v{32+e}")
        k(f"v_exp_f32 v{16+e}, v{16+e}")
        k("s_nop 0")
        k(f"v_add_f32 v58, v58, v{16+e}"); k(f"v_add_f32 v59, v59, v{32+e}")
    k("ds_bpermute_b32 v56, v4, v58"); k("ds_bpermute_b32 v57, v4, v59")
    k("s_waitcnt lgkmcnt(0)")
    k("v_add_f32 v58, v58, v56"); k("v_add_f32 v59, v59, v57")
    k("v_rcp_f32 v58, v58"); k("v_rcp_f32 v59, v59"); k("s_nop 0")
    for e in range(16):
        k(f"v_mul_f32 v{16+e}, v{16+e}, v58"); k(f"v_mul_f32 v{32+e}, v{32+e}, v59")
        rne(k, 16+e); rne(k, 32+e)

def attn_kv(name, qkv, part):
    k = K(name, 256, 256, lds=4*8448 + 4*6144)
    done = "L_done_"+name
    k("s_cmp_ge_u32 s2, 256"); k(f"s_cbranch_scc1 {done}")
    prologue(k, qkv, [(16, part, 32*8*PART*4)])
    for e in range(64): k(f"v_mov_b32 v{64+e}, 0")
    for e in range(4): k(f"v_mov_b32 v{128+e}, 0x3f803f80")
    TB = 4*8448
    k(f"s_mul_i32 s32, s30, 6144"); k(f"s_add_u32 s32, s32, {TB}")
    for tile in range(2):
        k("s_lshl_b32 s31, s29, 8"); k("s_lshl_b32 s33, s30, 6"); k("s_add_u32 s31, s31, s33")
        k(f"s_add_u32 s31, s31, {tile*32}")
        k(f"s_mul_i32 s33, s31, {3*D*2}")
        k(f"v_mul_u32_u24 v7, {3*D*2}, v2")
        k("v_add_u32 v7, s33, v7")
        k("s_lshl_b32 s34, s28, 6"); k(f"s_add_u32 s34, s34, {D*2}")
        k("v_lshrrev_b32 v61, 2, v0"); k(f"v_mul_u32_u24 v61, {3*D*2}, v61")
        k("v_and_b32 v62, 3, v0"); k("v_lshlrev_b32 v62, 4, v62"); k("v_add_u32 v61, v61, v62")
        k("v_add_u32 v61, s33, v61"); k("s_lshl_b32 s35, s28, 6"); k(f"s_add_u32 s35, s35, {2*D*2}")
        k("v_add_u32 v61, s35, v61")
        k("buffer_load_dwordx4 v[132:135], v61, s[8:11], 0 offen")
        k(f"v_add_u32 v61, {16*3*D*2}, v61")
        k("buffer_load_dwordx4 v[136:139], v61, s[8:11], 0 offen")
        phi(k, "s34", 7)
        k("v_lshlrev_b32 v6, 7, v2"); k("v_lshlrev_b32 v62, 3, v3"); k("v_add_u32 v6, v6, v62")
        k("v_add_u32 v6, s32, v6")
        for sgn in range(2):
            for q in range(4):
                b = 16 + 16*sgn + 4*q
                k(f"v_cvt_pk_bf16_f32 v{b}, v{b}, v{b+1}"); k(f"v_cvt_pk_bf16_f32 v{b+1}, v{b+2}, v{b+3}")
                k(f"ds_write_b64 v6, v[{b}:{b+1}] offset:{sgn*64 + q*16}")
        k("v_lshlrev_b32 v6, 4, v0"); k("v_add_u32 v6, s32, v6")
        k("s_waitcnt vmcnt(0)")
        k("ds_write_b128 v6, v[132:135] offset:4096")
        k("ds_write_b128 v6, v[136:139] offset:5120")
        k("s_waitcnt lgkmcnt(0)")
        k("v_lshlrev_b32 v6, 3, v3"); k("v_bfe_u32 v61, v0, 2, 2"); k("v_add_u32 v6, v6, v61")
        k("v_bfe_u32 v61, v0, 4, 1"); k("v_lshlrev_b32 v61, 4, v61"); k("v_and_b32 v62, 3, v0"); k("v_lshlrev_b32 v62, 2, v62")
        k("v_add_u32 v61, v61, v62"); k("v_lshlrev_b32 v61, 1, v61")
        k("v_lshlrev_b32 v62, 7, v6"); k("v_add_u32 v62, v62, v61"); k("v_add_u32 v62, s32, v62")
        k("v_lshlrev_b32 v63, 6, v6"); k("v_add_u32 v63, v63, v61"); k("v_add_u32 v63, s32, v63")
        for ks in range(2):
            for ft in range(2):
                for h in range(2):
                    k(f"ds_read_b64_tr_b16 v[{16+4*ft+2*h}:{17+4*ft+2*h}], v62 offset:{(16*ks+4*h)*128 + ft*64}")
            for h in range(2):
                k(f"ds_read_b64_tr_b16 v[{24+2*h}:{25+2*h}], v63 offset:{4096 + (16*ks+4*h)*64}")
            k("s_waitcnt lgkmcnt(0)")
            for ft in range(2):
                k(f"v_mfma_f32_32x32x16_bf16 v[{64+16*ft}:{79+16*ft}], v[{16+4*ft}:{19+4*ft}], v[24:27], v[{64+16*ft}:{79+16*ft}]")
                k(f"v_mfma_f32_32x32x16_bf16 v[{96+16*ft}:{111+16*ft}], v[{16+4*ft}:{19+4*ft}], v[128:131], v[{96+16*ft}:{111+16*ft}]")
            k("s_nop 7"); k("s_nop 7")
    k("s_nop 15")
    k(f"s_mul_i32 s32, s30, 8448")
    k("v_lshlrev_b32 v6, 2, v2"); k("v_lshlrev_b32 v7, 9, v3"); k("v_add_u32 v6, v6, v7"); k("v_add_u32 v6, s32, v6")
    k("v_lshlrev_b32 v7, 4, v3"); k("v_add_u32 v7, s32, v7")
    for ft in range(2):
        for r in range(16):
            f = 32*ft + (r&3) + 8*(r>>2)
            k(f"ds_write_b32 v6, v{64+16*ft+r} offset:{f*128}")
            k(f"ds_write_b32 v7, v{96+16*ft+r} offset:{8192 + f*4}")
    k("s_waitcnt lgkmcnt(0)"); k("s_barrier")
    k("v_lshlrev_b32 v6, 2, v60")
    k(f"s_lshl_b32 s31, s28, 3"); k("s_add_u32 s31, s31, s29"); k(f"s_mul_i32 s31, s31, {PART*4}")
    k("v_add_u32 v7, s31, v6")
    for i in range(9):
        guard = (i == 8)
        if guard:
            k("v_cmp_gt_u32 vcc, 64, v60"); k("s_and_saveexec_b64 s[36:37], vcc")
        for w in range(4): k(f"ds_read_b32 v{16+w}, v6 offset:{w*8448 + i*1024}")
        k("s_waitcnt lgkmcnt(0)")
        k("v_add_f32 v16, v16, v17"); k("v_add_f32 v18, v18, v19"); k("v_add_f32 v16, v16, v18")
        k(f"s_mov_b32 s33, {i*1024}")
        k(f"buffer_store_dword v16, v7, s[16:19], s33 offen")
    k.label(done)
    return k, 144

def attn_o(name, qkv, part, Out):
    k = K(name, 256, 256, lds=8448)
    done = "L_done_"+name
    k("s_cmp_ge_u32 s2, 256"); k(f"s_cbranch_scc1 {done}")
    prologue(k, qkv, [(16, part, 32*8*PART*4), (20, Out, M*D*2)])
    k("v_lshlrev_b32 v6, 2, v60")
    k(f"s_mul_i32 s31, s28, {8*PART*4}")
    k("v_add_u32 v7, s31, v6")
    for i in range(9):
        if i == 8:
            k("v_cmp_gt_u32 vcc, 64, v60"); k("s_and_saveexec_b64 s[36:37], vcc")
        for c in range(8):
            k(f"s_mov_b32 s33, {c*PART*4 + i*1024}")
            k(f"buffer_load_dword v{64+8*i+c}, v7, s[16:19], s33 offen")
    k("s_mov_b64 exec, -1")
    k("s_waitcnt vmcnt(0)")
    for i in range(9):
        if i == 8:
            k("v_cmp_gt_u32 vcc, 64, v60"); k("s_and_saveexec_b64 s[36:37], vcc")
        for c in range(1,8): k(f"v_add_f32 v{64+8*i}, v{64+8*i}, v{64+8*i+c}")
        rne(k, 64+8*i)
        k(f"ds_write_b32 v6, v{64+8*i} offset:{i*1024}")
    k("s_mov_b64 exec, -1")
    k("s_waitcnt lgkmcnt(0)"); k("s_barrier")
    k("v_lshlrev_b32 v6, 2, v2"); k("v_lshlrev_b32 v7, 9, v3"); k("v_add_u32 v6, v6, v7")
    for e in range(32):
        m, j = e//8, e%8
        f = 16*m + (j&3) + 8*(j>>2)
        k(f"ds_read_b32 v{80+e}, v6 offset:{f*128}")
    k("v_lshlrev_b32 v7, 4, v3")
    for e in range(32):
        m, j = e//8, e%8
        f = 16*m + (j&3) + 8*(j>>2)
        k(f"ds_read_b32 v{112+e}, v7 offset:{8192 + f*4}")
    k("s_waitcnt lgkmcnt(0)")
    for e in range(16): k(f"v_cvt_pk_bf16_f32 v{64+e}, v{80+2*e}, v{81+2*e}")
    for tile in range(2):
        k("s_lshl_b32 s31, s29, 8"); k("s_lshl_b32 s33, s30, 6"); k("s_add_u32 s31, s31, s33")
        k(f"s_add_u32 s31, s31, {tile*32}")
        k(f"s_mul_i32 s33, s31, {3*D*2}")
        k(f"v_mul_u32_u24 v7, {3*D*2}, v2"); k("v_add_u32 v7, s33, v7")
        k("s_lshl_b32 s34, s28, 6")
        phi(k, "s34", 7)
        k("v_mov_b32 v56, 0")
        for e in range(32): k(f"v_fmac_f32 v56, v{16+e}, v{112+e}")
        k("ds_bpermute_b32 v57, v4, v56")
        for e in range(16): k(f"v_cvt_pk_bf16_f32 v{80+e}, v{16+2*e}, v{17+2*e}")
        for e in range(16): k(f"v_mov_b32 v{16+e}, 0")
        k("s_waitcnt lgkmcnt(0)")
        k("v_add_f32 v56, v56, v57"); rne(k, 56)
        k("v_add_f32 v56, 0x358637bd, v56"); rne(k, 56)
        k("v_rcp_f32 v56, v56")
        for m in range(4):
            k(f"v_mfma_f32_32x32x16_bf16 v[16:31], v[{64+4*m}:{67+4*m}], v[{80+4*m}:{83+4*m}], v[16:31]")
        k("s_nop 15"); k("s_nop 3")
        k("s_lshl_b32 s33, s31, 11"); k("v_lshlrev_b32 v6, 11, v2"); k("v_add_u32 v6, s33, v6")
        k("v_lshlrev_b32 v7, 3, v3"); k("v_add_u32 v6, v6, v7"); k("v_add_u32 v6, s34, v6")
        for q in range(4):
            x = 16+4*q
            for e in range(4):
                rne(k, x+e); k(f"v_mul_f32 v{x+e}, v{x+e}, v56")
            k(f"v_cvt_pk_bf16_f32 v{x}, v{x}, v{x+1}"); k(f"v_cvt_pk_bf16_f32 v{x+1}, v{x+2}, v{x+3}")
            k(f"buffer_store_dwordx2 v[{x}:{x+1}], v6, s[20:23], 0 offen offset:{q*16}")
        k("s_nop 3")
    k.label(done)
    return k, 144
```

```python
from asmlib import K
import os
EXP=os.environ.get('EXP','')

M = 2048
BM = 128
BK = 64

def load_ptrs(k, bufs):
    idxs = sorted(set(b[1][0] for b in bufs))
    reg = {}
    for i, idx in enumerate(idxs):
        reg[idx] = 40 + 2*i
        k(f"s_load_dwordx2 s[{40+2*i}:{41+2*i}], s[0:1], {idx*8}")
    k("s_waitcnt lgkmcnt(0)")
    for q, (idx, off), nb in bufs:
        r = reg[idx]
        if off:
            k(f"s_add_u32 s{q}, s{r}, {off}")
            k(f"s_addc_u32 s{q+1}, s{r+1}, 0")
        else:
            k(f"s_mov_b32 s{q}, s{r}")
            k(f"s_mov_b32 s{q+1}, s{r+1}")
        k(f"s_mov_b32 s{q+2}, {nb}")
        k(f"s_mov_b32 s{q+3}, 0x00020000")

def gelu_code(k, x, t):
    k(f"v_mul_f32 v{t}, v{x}, v{x}")
    k(f"v_fma_f32 v{t}, v{t}, s36, 1.0")
    k(f"v_mul_f32 v{t}, v{t}, v{x}")
    k(f"v_mul_f32 v{t}, s37, v{t}")
    k(f"v_exp_f32 v{t}, v{t}")
    k(f"s_nop 0")
    k(f"v_add_f32 v{t}, 1.0, v{t}")
    k(f"v_rcp_f32 v{t}, v{t}")
    k(f"s_nop 0")
    k(f"v_mul_f32 v{x}, v{x}, v{t}")

def rne(k, x):
    k(f"v_cvt_pk_bf16_f32 v{x}, v{x}, v{x}")
    k(f"v_lshlrev_b32 v{x}, 16, v{x}")

def gemm(name, A, W, Out, N, Kd, BN, epi, R1=None, R2=None, shift=False, abytes=None, NS=4):
    WM, WN = 4, 2
    NBN = N // BN; GRID = 16*NBN
    TM = BM // WM // 32
    TN = BN // WN // 32
    U = BN // 8
    nIB = BN // 64
    swzB = (BN % 64 == 0)
    ASZ = BM*BK*2; BSZ = BK*BN*2
    ABASE = 0; BBASE = NS*ASZ
    k = K(name, GRID, 512, lds=NS*(ASZ + BSZ))
    NIT = Kd // BK
    done = "L_done_" + name
    k(f"s_cmp_ge_u32 s2, {GRID}")
    k(f"s_cbranch_scc1 {done}")
    a_off = A[1] - (2*Kd*2 if shift else 0)
    bufs = [(8, (A[0], a_off), (abytes or M*Kd*2) + (4*Kd*2 if shift else 0)), (12, (W, 0), Kd*N*2), (16, Out, M*N*2)]
    if R1: bufs.append((20, R1, M*N*2))
    if R2: bufs.append((24, R2, M*N*2))
    load_ptrs(k, bufs)
    k("s_mov_b32 s36, 0x3d372713")
    import struct, math
    c = -2*math.sqrt(2/math.pi)*math.log2(math.e)
    k(f"s_mov_b32 s37, 0x{struct.unpack('<I', struct.pack('<f', c))[0]:08x}")
    mg = -(-65536 // NBN)
    assert all((i*mg)>>16 == i//NBN for i in range(GRID))
    k(f"s_mul_i32 s28, s2, {mg}"); k("s_lshr_b32 s28, s28, 16")
    k(f"s_mul_i32 s29, s28, {NBN}"); k("s_sub_u32 s29, s2, s29")
    k("v_lshrrev_b32 v1, 6, v0")
    k("s_nop 0")
    k("v_readfirstlane_b32 s30, v1")
    k("v_and_b32 v0, 63, v0")
    k("v_lshrrev_b32 v1, 3, v0")
    k("s_lshl_b32 s31, s30, 4")
    k(f"s_lshl_b32 s34, s28, 7")
    k("s_add_u32 s31, s31, s34")
    k("v_add_u32 v1, s31, v1")
    for j in range(2):
        k(f"v_add_u32 v6, {8*j}, v1")
        k("v_lshrrev_b32 v7, 1, v6")
        k("v_and_b32 v7, 7, v7")
        k("v_and_b32 v8, 7, v0")
        k("v_xor_b32 v7, v7, v8")
        k("v_lshlrev_b32 v7, 4, v7")
        k(f"s_mov_b32 s35, {Kd*2}")
        k(f"v_mul_lo_u32 v6, v6, s35")
        k(f"v_add_u32 v{2+j}, v6, v7")
    magic = -(-65536 // U)
    for L in range(64*U + 64):
        assert (L*magic) >> 16 == L // U
    k(f"s_mul_i32 s31, s30, {nIB*64}")
    k(f"s_mul_i32 s34, s29, {BN*2}")
    for j in range(nIB):
        k(f"v_add_u32 v6, s31, v0")
        k(f"v_add_u32 v6, {64*j}, v6")
        k(f"v_mul_u32_u24 v7, {magic}, v6")
        k(f"v_lshrrev_b32 v7, 16, v7")
        k(f"v_mul_u32_u24 v8, {U}, v7")
        k(f"v_sub_u32 v8, v6, v8")
        if swzB:
            k("v_lshlrev_b32 v9, 1, v7")
            k("v_and_b32 v9, 4, v9")
            k("v_xor_b32 v8, v8, v9")
        k("v_lshlrev_b32 v8, 4, v8")
        k(f"s_mov_b32 s35, {N*2}")
        k("v_mul_lo_u32 v7, v7, s35")
        k("v_add_u32 v7, v7, v8")
        k(f"v_add_u32 v{10+j}, s34, v7")
    if WN == 2:
        k("s_lshr_b32 s31, s30, 1"); k("s_and_b32 s34, s30, 1")
    else:
        k("s_mov_b32 s31, s30"); k("s_mov_b32 s34, 0")
    k(f"s_mul_i32 s38, s31, {TM*32}")
    k(f"s_mul_i32 s39, s34, {TN*32}")
    k("v_and_b32 v6, 31, v0")
    k("v_add_u32 v6, s38, v6")
    k("v_lshrrev_b32 v7, 1, v6")
    k("v_and_b32 v7, 7, v7")
    k("v_lshrrev_b32 v8, 5, v0")
    k("v_xor_b32 v7, v7, v8")
    k("v_lshlrev_b32 v7, 4, v7")
    k("v_lshlrev_b32 v6, 7, v6")
    k("v_add_u32 v6, v6, v7")
    for ks in range(4):
        k(f"v_xor_b32 v{20+ks}, {ks*32}, v6")
    k("v_lshrrev_b32 v6, 5, v0")
    k("v_lshlrev_b32 v6, 3, v6")
    k("v_bfe_u32 v7, v0, 2, 2")
    k("v_add_u32 v6, v6, v7")
    k("v_bfe_u32 v8, v0, 4, 1")
    k("v_lshlrev_b32 v8, 4, v8")
    k("v_and_b32 v9, 3, v0")
    k("v_lshlrev_b32 v9, 2, v9")
    k("v_add_u32 v8, v8, v9")
    k("v_add_u32 v8, s39, v8")
    nBaddr = TN if swzB else 1
    for t in range(nBaddr):
        k(f"v_add_u32 v9, {32*t}, v8")
        k("v_lshlrev_b32 v9, 1, v9")
        if swzB:
            k("v_lshlrev_b32 v18, 5, v7")
            k("v_and_b32 v18, 64, v18")
            k("v_xor_b32 v9, v9, v18")
        k(f"v_mul_u32_u24 v19, {BN*2}, v6")
        k(f"v_add_u32 v{24+t}, v19, v9")
        k(f"v_add_u32 v{24+t}, {BBASE}, v{24+t}")
        k(f"v_add_u32 v{28+t}, {2*BSZ}, v{24+t}")
    ACC = 32
    nacc = TM*TN*16
    for i in range(nacc):
        k(f"v_mov_b32 v{ACC+i}, 0")
    FR = ACC + nacc
    FS = (TM+TN)*4
    NV = FR + 2*FS + 8
    TMP = FR + 2*FS
    k(f"s_lshl_b32 s40, s30, 11")
    k(f"s_mul_i32 s41, s30, {nIB*1024}")
    k(f"s_add_u32 s41, s41, {BBASE}")
    k("s_mov_b32 s32, 0"); k("s_mov_b32 s33, 0")
    def shift_soff(it):
        g = (it*BK)//256
        return {0: -1, 1: 1, 2: -2, 3: 2}[g]
    def dma(stage):
        for j in range(2):
            k(f"s_add_u32 m0, s40, {stage*ASZ + j*1024}")
            k("s_nop 0")
            k(f"buffer_load_dwordx4 v{2+j}, s[8:11], s32 offen lds")
        for j in range(nIB):
            k(f"s_add_u32 m0, s41, {stage*BSZ + j*1024}")
            k("s_nop 0")
            k(f"buffer_load_dwordx4 v{10+j}, s[12:15], s33 offen lds")
    TBL = {0: 1, 1: 3, 2: 0, 3: 4}
    for st in range(NS-1):
        k(f"s_mov_b32 s32, {st*BK*2 + (TBL[(st*BK)//256]*Kd*2 if shift else 0)}")
        k(f"s_mov_b32 s33, {st*BK*N*2}")
        dma(st)
    def reads(stage, ks, fs):
        b = FR + fs*FS
        n = 0
        if 'nords' in EXP: return
        for i in range(TM):
            k(f"ds_read_b128 v[{b+4*i}:{b+4*i+3}], v{20+ks} offset:{ABASE + stage*ASZ + i*4096}")
            n += 1
        for t in range(TN):
            for h in range(2):
                off = (stage%2)*BSZ + (16*ks + 4*h)*BN*2 + (0 if swzB else t*64)
                a = 24 + 4*(stage//2) + (t if swzB else 0)
                r = b + 4*TM + 4*t + 2*h
                k(f"ds_read_b64_tr_b16 v[{r}:{r+1}], v{a} offset:{off}")
                n += 1
        return n
    def mfmas(fs):
        b = FR + fs*FS
        if 'nomfma' in EXP: return
        for i in range(TM):
            for t in range(TN):
                a = ACC + (i*TN + t)*16
                k(f"v_mfma_f32_32x32x16_bf16 v[{a}:{a+15}], v[{b+4*TM+4*t}:{b+4*TM+4*t+3}], v[{b+4*i}:{b+4*i+3}], v[{a}:{a+15}]")
    nrd = TM + 2*TN
    k("s_mov_b32 s31, 0")
    loop = "L_loop_" + name
    k.label(loop)
    nper = 2 + nIB
    endl = "L_lend_" + name
    for stage in range(NS):
        if NIT % NS:
            k(f"s_cmp_ge_u32 s31, {NIT - stage}")
            k(f"s_cbranch_scc1 {endl}")
        tail = k.newlabel("tail"); join = k.newlabel("join")
        k(f"s_cmp_ge_u32 s31, {NIT - stage - (NS-1)}")
        k(f"s_cbranch_scc1 {tail}")
        k(f"s_waitcnt vmcnt({(NS-2)*nper})")
        k("s_barrier")
        k(f"s_add_u32 s35, s31, {stage+NS-1}")
        k(f"s_mul_i32 s33, s35, {BK*N*2}")
        k(f"s_lshl_b32 s32, s35, 7")
        if shift:
            k(f"s_lshr_b32 s34, s35, 2")
            k("s_mov_b32 s39, 0x04000301")
            k("s_lshl_b32 s34, s34, 3")
            k("s_lshr_b32 s39, s39, s34")
            k("s_and_b32 s39, s39, 0xff")
            k(f"s_mul_i32 s39, s39, {Kd*2}")
            k("s_add_u32 s32, s32, s39")
        if 'nodma' not in EXP: dma((stage + NS - 1) % NS)
        k(f"s_branch {join}")
        k.label(tail)
        k("s_waitcnt vmcnt(0)")
        k("s_barrier")
        k.label(join)
        reads(stage, 0, 0)
        for ks in range(4):
            if ks < 3:
                reads(stage, ks+1, (ks+1) & 1)
                k(f"s_waitcnt lgkmcnt({nrd})")
            else:
                k("s_waitcnt lgkmcnt(0)")
            mfmas(ks & 1)
    k(f"s_add_u32 s31, s31, {NS}")
    k(f"s_cmp_lt_u32 s31, {NIT}")
    k(f"s_cbranch_scc1 {loop}")
    k.label(endl)
    k("s_nop 15"); k("s_nop 7")
    if WN == 2:
        k("s_lshr_b32 s31, s30, 1"); k("s_and_b32 s34, s30, 1")
    else:
        k("s_mov_b32 s31, s30"); k("s_mov_b32 s34, 0")
    k(f"s_mul_i32 s38, s31, {TM*32}")
    k(f"s_mul_i32 s39, s34, {TN*32}")
    k(f"s_lshl_b32 s31, s28, 7"); k("s_add_u32 s38, s38, s31")
    k(f"s_mul_i32 s31, s29, {BN}"); k("s_add_u32 s39, s39, s31")
    k("v_and_b32 v1, 31, v0")
    k("v_add_u32 v1, s38, v1")
    k(f"s_mov_b32 s35, {N*2}")
    k("v_mul_lo_u32 v1, v1, s35")
    k("v_lshrrev_b32 v2, 5, v0")
    k("v_lshlrev_b32 v2, 3, v2")
    k("v_add_u32 v1, v1, v2")
    k("s_lshl_b32 s39, s39, 1")
    k("v_add_u32 v1, s39, v1")
    T = TMP
    for i in range(TM):
        if i:
            k(f"v_add_u32 v1, {32*N*2}, v1")
        for t in range(TN):
            a = ACC + (i*TN + t)*16
            for q in range(4):
                off = (32*t + 8*q)*2
                x = a + 4*q
                if R1:
                    k(f"buffer_load_dwordx2 v[{T}:{T+1}], v1, s[20:23], 0 offen offset:{off}")
                if R2:
                    k(f"buffer_load_dwordx2 v[{T+2}:{T+3}], v1, s[24:27], 0 offen offset:{off}")
                if epi in ("gelu",) or R1:
                    for e in range(4): rne(k, x+e)
                if epi == "gelu":
                    for e in range(4): gelu_code(k, x+e, T+4)
                if R1:
                    k("s_waitcnt vmcnt(%d)" % (1 if R2 else 0))
                    for e in range(4):
                        src = T + e//2
                        if e % 2 == 0: k(f"v_lshlrev_b32 v{T+4}, 16, v{src}")
                        else: k(f"v_and_b32 v{T+4}, 0xffff0000, v{src}")
                        k(f"v_add_f32 v{x+e}, v{x+e}, v{T+4}")
                if R2:
                    for e in range(4): rne(k, x+e)
                    k("s_waitcnt vmcnt(0)")
                    for e in range(4):
                        src = T + 2 + e//2
                        if e % 2 == 0: k(f"v_lshlrev_b32 v{T+4}, 16, v{src}")
                        else: k(f"v_and_b32 v{T+4}, 0xffff0000, v{src}")
                        k(f"v_add_f32 v{x+e}, v{x+e}, v{T+4}")
                k(f"v_cvt_pk_bf16_f32 v{x}, v{x}, v{x+1}")
                k(f"v_cvt_pk_bf16_f32 v{x+1}, v{x+2}, v{x+3}")
                k(f"buffer_store_dwordx2 v[{x}:{x+1}], v1, s[16:19], 0 offen offset:{off}")
    k.label(done)
    return k, NV
```

```python
from asmlib import K
import os
EXP=os.environ.get('EXP','')

M = 2048
BM = 128
BK = 64

def load_ptrs(k, bufs):
    idxs = sorted(set(b[1][0] for b in bufs))
    reg = {}
    for i, idx in enumerate(idxs):
        reg[idx] = 40 + 2*i
        k(f"s_load_dwordx2 s[{40+2*i}:{41+2*i}], s[0:1], {idx*8}")
    k("s_waitcnt lgkmcnt(0)")
    for q, (idx, off), nb in bufs:
        r = reg[idx]
        if off:
            k(f"s_add_u32 s{q}, s{r}, {off}")
            k(f"s_addc_u32 s{q+1}, s{r+1}, 0")
        else:
            k(f"s_mov_b32 s{q}, s{r}")
            k(f"s_mov_b32 s{q+1}, s{r+1}")
        k(f"s_mov_b32 s{q+2}, {nb}")
        k(f"s_mov_b32 s{q+3}, 0x00020000")

def gelu_code(k, x, t):
    k(f"v_mul_f32 v{t}, v{x}, v{x}")
    k(f"v_fma_f32 v{t}, v{t}, s36, 1.0")
    k(f"v_mul_f32 v{t}, v{t}, v{x}")
    k(f"v_mul_f32 v{t}, s37, v{t}")
    k(f"v_exp_f32 v{t}, v{t}")
    k(f"s_nop 0")
    k(f"v_add_f32 v{t}, 1.0, v{t}")
    k(f"v_rcp_f32 v{t}, v{t}")
    k(f"s_nop 0")
    k(f"v_mul_f32 v{x}, v{x}, v{t}")

def rne(k, x):
    k(f"v_cvt_pk_bf16_f32 v{x}, v{x}, v{x}")
    k(f"v_lshlrev_b32 v{x}, 16, v{x}")

def gemm(name, A, W, Out, N, Kd, BN, epi, R1=None, R2=None, shift=False, abytes=None, NS=4):
    WM, WN = 4, 2
    NBN = N // BN; GRID = 16*NBN
    TM = BM // WM // 32
    TN = BN // WN // 32
    U = BN // 8
    nIB = BN // 64
    swzB = (BN % 64 == 0)
    ASZ = BM*BK*2; BSZ = BK*BN*2
    ABASE = 0; BBASE = NS*ASZ
    k = K(name, GRID, 512, lds=NS*(ASZ + BSZ))
    NIT = Kd // BK
    done = "L_done_" + name
    k(f"s_cmp_ge_u32 s2, {GRID}")
    k(f"s_cbranch_scc1 {done}")
    a_off = A[1] - (2*Kd*2 if shift else 0)
    bufs = [(8, (A[0], a_off), (abytes or M*Kd*2) + (4*Kd*2 if shift else 0)), (12, (W, 0), Kd*N*2), (16, Out, M*N*2)]
    if R1: bufs.append((20, R1, M*N*2))
    if R2: bufs.append((24, R2, M*N*2))
    load_ptrs(k, bufs)
    k("s_mov_b32 s36, 0x3d372713")
    import struct, math
    c = -2*math.sqrt(2/math.pi)*math.log2(math.e)
    k(f"s_mov_b32 s37, 0x{struct.unpack('<I', struct.pack('<f', c))[0]:08x}")
    PB = {16: (4 if BN == 192 else 8), 14: 7}[NBN]
    GX = NBN // PB; PA = GRID // 8 // PB
    assert PA * (8 // GX) == 16
    mg = -(-65536 // PB)
    assert all((i*mg)>>16 == i//PB for i in range(GRID//8))
    k("s_and_b32 s3, s2, 7"); k("s_lshr_b32 s4, s2, 3")
    k(f"s_mul_i32 s5, s4, {mg}"); k("s_lshr_b32 s5, s5, 16")
    k(f"s_mul_i32 s6, s5, {PB}"); k("s_sub_u32 s6, s4, s6")
    k(f"s_lshr_b32 s7, s3, {GX.bit_length()-1}"); k(f"s_mul_i32 s7, s7, {PA}"); k("s_add_u32 s28, s7, s5")
    k(f"s_and_b32 s7, s3, {GX-1}"); k(f"s_mul_i32 s7, s7, {PB}"); k("s_add_u32 s29, s7, s6")
    k("v_lshrrev_b32 v1, 6, v0")
    k("s_nop 0")
    k("v_readfirstlane_b32 s30, v1")
    k("v_and_b32 v0, 63, v0")
    k("v_lshrrev_b32 v1, 3, v0")
    k("s_lshl_b32 s31, s30, 4")
    k(f"s_lshl_b32 s34, s28, 7")
    k("s_add_u32 s31, s31, s34")
    k("v_add_u32 v1, s31, v1")
    for j in range(2):
        k(f"v_add_u32 v6, {8*j}, v1")
        k("v_lshrrev_b32 v7, 1, v6")
        k("v_and_b32 v7, 7, v7")
        k("v_and_b32 v8, 7, v0")
        k("v_xor_b32 v7, v7, v8")
        k("v_lshlrev_b32 v7, 4, v7")
        k(f"s_mov_b32 s35, {Kd*2}")
        k(f"v_mul_lo_u32 v6, v6, s35")
        k(f"v_add_u32 v{2+j}, v6, v7")
    magic = -(-65536 // U)
    for L in range(64*U + 64):
        assert (L*magic) >> 16 == L // U
    k(f"s_mul_i32 s31, s30, {nIB*64}")
    k(f"s_mul_i32 s34, s29, {BN*2}")
    for j in range(nIB):
        k(f"v_add_u32 v6, s31, v0")
        k(f"v_add_u32 v6, {64*j}, v6")
        k(f"v_mul_u32_u24 v7, {magic}, v6")
        k(f"v_lshrrev_b32 v7, 16, v7")
        k(f"v_mul_u32_u24 v8, {U}, v7")
        k(f"v_sub_u32 v8, v6, v8")
        if swzB:
            k("v_lshlrev_b32 v9, 1, v7")
            k("v_and_b32 v9, 4, v9")
            k("v_xor_b32 v8, v8, v9")
        k("v_lshlrev_b32 v8, 4, v8")
        k(f"s_mov_b32 s35, {N*2}")
        k("v_mul_lo_u32 v7, v7, s35")
        k("v_add_u32 v7, v7, v8")
        k(f"v_add_u32 v{10+j}, s34, v7")
    if WN == 2:
        k("s_lshr_b32 s31, s30, 1"); k("s_and_b32 s34, s30, 1")
    else:
        k("s_mov_b32 s31, s30"); k("s_mov_b32 s34, 0")
    k(f"s_mul_i32 s38, s31, {TM*32}")
    k(f"s_mul_i32 s39, s34, {TN*32}")
    k("v_and_b32 v6, 31, v0")
    k("v_add_u32 v6, s38, v6")
    k("v_lshrrev_b32 v7, 1, v6")
    k("v_and_b32 v7, 7, v7")
    k("v_lshrrev_b32 v8, 5, v0")
    k("v_xor_b32 v7, v7, v8")
    k("v_lshlrev_b32 v7, 4, v7")
    k("v_lshlrev_b32 v6, 7, v6")
    k("v_add_u32 v6, v6, v7")
    for ks in range(4):
        k(f"v_xor_b32 v{20+ks}, {ks*32}, v6")
        k(f"v_add_u32 v{36+ks}, {4*ASZ}, v{20+ks}")
    k("v_lshrrev_b32 v6, 5, v0")
    k("v_lshlrev_b32 v6, 3, v6")
    k("v_bfe_u32 v7, v0, 2, 2")
    k("v_add_u32 v6, v6, v7")
    k("v_bfe_u32 v8, v0, 4, 1")
    k("v_lshlrev_b32 v8, 4, v8")
    k("v_and_b32 v9, 3, v0")
    k("v_lshlrev_b32 v9, 2, v9")
    k("v_add_u32 v8, v8, v9")
    k("v_add_u32 v8, s39, v8")
    nBaddr = TN if swzB else 1
    for t in range(nBaddr):
        k(f"v_add_u32 v9, {32*t}, v8")
        k("v_lshlrev_b32 v9, 1, v9")
        if swzB:
            k("v_lshlrev_b32 v18, 5, v7")
            k("v_and_b32 v18, 64, v18")
            k("v_xor_b32 v9, v9, v18")
        k(f"v_mul_u32_u24 v19, {BN*2}, v6")
        k(f"v_add_u32 v{24+t}, v19, v9")
        k(f"v_add_u32 v{24+t}, {BBASE}, v{24+t}")
        for sp in range(1, (NS+1)//2):
            k(f"v_add_u32 v{24+4*sp+t}, {2*sp*BSZ}, v{24+t}")
    ACC = 40
    nacc = TM*TN*16
    for i in range(nacc):
        k(f"v_mov_b32 v{ACC+i}, 0")
    FR = ACC + nacc
    FS = (TM+TN)*4
    NV = FR + 2*FS + 8
    TMP = FR + 2*FS
    k(f"s_lshl_b32 s40, s30, 11")
    k(f"s_mul_i32 s41, s30, {nIB*1024}")
    k(f"s_add_u32 s41, s41, {BBASE}")
    k("s_mov_b32 s32, 0"); k("s_mov_b32 s33, 0")
    def shift_soff(it):
        g = (it*BK)//256
        return {0: -1, 1: 1, 2: -2, 3: 2}[g]
    def dma(stage):
        for j in range(2):
            k(f"s_add_u32 m0, s40, {stage*ASZ + j*1024}")
            k("s_nop 0")
            k(f"buffer_load_dwordx4 v{2+j}, s[8:11], s32 offen lds")
        for j in range(nIB):
            k(f"s_add_u32 m0, s41, {stage*BSZ + j*1024}")
            k("s_nop 0")
            k(f"buffer_load_dwordx4 v{10+j}, s[12:15], s33 offen lds")
    TBL = {0: 1, 1: 3, 2: 0, 3: 4}
    for st in range(NS-1):
        k(f"s_mov_b32 s32, {st*BK*2 + (TBL[(st*BK)//256]*Kd*2 if shift else 0)}")
        k(f"s_mov_b32 s33, {st*BK*N*2}")
        dma(st)
    def reads(stage, ks, fs):
        b = FR + fs*FS
        n = 0
        if 'nords' in EXP: return
        for i in range(TM):
            k(f"ds_read_b128 v[{b+4*i}:{b+4*i+3}], v{(20 if stage < 4 else 36)+ks} offset:{ABASE + (stage%4)*ASZ + i*4096}")
            n += 1
        for t in range(TN):
            for h in range(2):
                off = (stage%2)*BSZ + (16*ks + 4*h)*BN*2 + (0 if swzB else t*64)
                a = 24 + 4*(stage//2) + (t if swzB else 0)
                r = b + 4*TM + 4*t + 2*h
                k(f"ds_read_b64_tr_b16 v[{r}:{r+1}], v{a} offset:{off}")
                n += 1
        return n
    def mfmas(fs):
        b = FR + fs*FS
        if 'nomfma' in EXP: return
        for i in range(TM):
            for t in range(TN):
                a = ACC + (i*TN + t)*16
                k(f"v_mfma_f32_32x32x16_bf16 v[{a}:{a+15}], v[{b+4*TM+4*t}:{b+4*TM+4*t+3}], v[{b+4*i}:{b+4*i+3}], v[{a}:{a+15}]")
    nrd = TM + 2*TN
    k("s_mov_b32 s31, 0")
    k(f"s_waitcnt vmcnt({(NS-2)*(2+nIB)})")
    k("s_barrier")
    reads(0, 0, 0)
    loop = "L_loop_" + name
    k.label(loop)
    nper = 2 + nIB
    endl = "L_lend_" + name
    for stage in range(NS):
        if NIT % NS:
            k(f"s_cmp_ge_u32 s31, {NIT - stage}")
            k(f"s_cbranch_scc1 {endl}")
        tail = k.newlabel("tail"); join = k.newlabel("join")
        k(f"s_cmp_ge_u32 s31, {NIT - stage - (NS-1)}")
        k(f"s_cbranch_scc1 {tail}")
        k(f"s_waitcnt vmcnt({(NS-3)*nper})")
        k("s_barrier")
        k(f"s_add_u32 s35, s31, {stage+NS-1}")
        k(f"s_mul_i32 s33, s35, {BK*N*2}")
        k(f"s_lshl_b32 s32, s35, 7")
        if shift:
            k(f"s_lshr_b32 s34, s35, 2")
            k("s_mov_b32 s39, 0x04000301")
            k("s_lshl_b32 s34, s34, 3")
            k("s_lshr_b32 s39, s39, s34")
            k("s_and_b32 s39, s39, 0xff")
            k(f"s_mul_i32 s39, s39, {Kd*2}")
            k("s_add_u32 s32, s32, s39")
        if 'nodma' not in EXP: dma((stage + NS - 1) % NS)
        k(f"s_branch {join}")
        k.label(tail)
        k("s_waitcnt vmcnt(0)")
        k("s_barrier")
        k.label(join)
        for ks in range(4):
            if ks < 3:
                reads(stage, ks+1, (ks+1) & 1)
            else:
                reads((stage+1) % NS, 0, 0)
            k(f"s_waitcnt lgkmcnt({nrd})")
            mfmas(ks & 1)
    k(f"s_add_u32 s31, s31, {NS}")
    k(f"s_cmp_lt_u32 s31, {NIT}")
    k(f"s_cbranch_scc1 {loop}")
    k.label(endl)
    k("s_nop 15"); k("s_nop 7")
    if WN == 2:
        k("s_lshr_b32 s31, s30, 1"); k("s_and_b32 s34, s30, 1")
    else:
        k("s_mov_b32 s31, s30"); k("s_mov_b32 s34, 0")
    k(f"s_mul_i32 s38, s31, {TM*32}")
    k(f"s_mul_i32 s39, s34, {TN*32}")
    k(f"s_lshl_b32 s31, s28, 7"); k("s_add_u32 s38, s38, s31")
    k(f"s_mul_i32 s31, s29, {BN}"); k("s_add_u32 s39, s39, s31")
    assert TM == 1
    T = TMP
    RS = TN*64 + 16
    CH = TN*4
    NRI = 32*CH // 64
    k("s_barrier")
    k(f"s_mul_i32 s32, s30, {32*RS}")
    k("v_and_b32 v1, 31, v0"); k(f"v_mul_u32_u24 v1, {RS}, v1")
    k("v_lshrrev_b32 v2, 5, v0"); k("v_lshlrev_b32 v2, 3, v2"); k("v_add_u32 v1, v1, v2"); k("v_add_u32 v1, s32, v1")
    for t in range(TN):
        a_ = ACC + t*16
        for q in range(4):
            x = a_ + 4*q
            if epi == "gelu":
                for e in range(4): rne(k, x+e)
                for e in range(4): gelu_code(k, x+e, T+4)
            k(f"v_cvt_pk_bf16_f32 v{x}, v{x}, v{x+1}")
            k(f"v_cvt_pk_bf16_f32 v{x+1}, v{x+2}, v{x+3}")
            k(f"ds_write_b64 v1, v[{x}:{x+1}] offset:{(32*t+8*q)*2}")
    mgc = -(-65536 // CH)
    assert all((L*mgc)>>16 == L//CH for L in range(32*CH))
    k(f"s_mov_b32 s35, {N*2}")
    k("s_lshl_b32 s39, s39, 1")
    for i in range(NRI):
        k(f"v_add_u32 v2, {64*i}, v0")
        k(f"v_mul_u32_u24 v3, {mgc}, v2"); k("v_lshrrev_b32 v3, 16, v3")
        k(f"v_mul_u32_u24 v4, {CH}, v3"); k("v_sub_u32 v4, v2, v4"); k("v_lshlrev_b32 v4, 4, v4")
        k(f"v_mul_u32_u24 v5, {RS}, v3"); k("v_add_u32 v5, v5, v4"); k(f"v_add_u32 v{8+i}, s32, v5")
        k("v_add_u32 v3, s38, v3"); k("v_mul_lo_u32 v3, v3, s35"); k("v_add_u32 v3, v3, v4"); k(f"v_add_u32 v{16+i}, s39, v3")
    k("s_waitcnt lgkmcnt(0)")
    D0 = ACC
    for i in range(NRI):
        k(f"ds_read_b128 v[{D0+4*i}:{D0+4*i+3}], v{8+i}")
        if R1: k(f"buffer_load_dwordx4 v[{D0+4*NRI+4*i}:{D0+4*NRI+4*i+3}], v{16+i}, s[20:23], 0 offen")
        if R2: k(f"buffer_load_dwordx4 v[{D0+8*NRI+4*i}:{D0+8*NRI+4*i+3}], v{16+i}, s[24:27], 0 offen")
    k("s_waitcnt lgkmcnt(0)")
    if R1: k("s_waitcnt vmcnt(0)")
    for i in range(NRI):
        if R1:
            for e in range(4):
                d = D0+4*i+e; r1 = D0+4*NRI+4*i+e; r2 = D0+8*NRI+4*i+e
                k(f"v_lshlrev_b32 v{T}, 16, v{d}"); k(f"v_and_b32 v{T+1}, 0xffff0000, v{d}")
                k(f"v_lshlrev_b32 v{T+2}, 16, v{r1}"); k(f"v_and_b32 v{T+3}, 0xffff0000, v{r1}")
                k(f"v_add_f32 v{T}, v{T}, v{T+2}"); k(f"v_add_f32 v{T+1}, v{T+1}, v{T+3}")
                k(f"v_cvt_pk_bf16_f32 v{d}, v{T}, v{T+1}")
                if R2:
                    k(f"v_lshlrev_b32 v{T}, 16, v{d}"); k(f"v_and_b32 v{T+1}, 0xffff0000, v{d}")
                    k(f"v_lshlrev_b32 v{T+2}, 16, v{r2}"); k(f"v_and_b32 v{T+3}, 0xffff0000, v{r2}")
                    k(f"v_add_f32 v{T}, v{T}, v{T+2}"); k(f"v_add_f32 v{T+1}, v{T+1}, v{T+3}")
                    k(f"v_cvt_pk_bf16_f32 v{d}, v{T}, v{T+1}")
        k(f"buffer_store_dwordx4 v[{D0+4*i}:{D0+4*i+3}], v{16+i}, s[16:19], 0 offen")
    k.label(done)
    return k, NV
```

```python
import sys
from asmlib import build
from gemm import gemm
from small import ln
from attn import attn_kv, attn_o, PART
MB = 1<<20
WS=11; OUT=9
XN=(WS,0); QKV=(WS,4*MB); PARTB=(WS,16*MB); O=(WS,20*MB); X2=(WS,24*MB); XP=(WS,28*MB); XPP=(WS,32*MB)
HPAD=(WS,36*MB); H=(WS,36*MB+4096); X1=(WS,42*MB); X1N=(WS,46*MB); G=(WS,50*MB); X3=(WS,66*MB)
ks=[]; order=[]
def add(kn):
    ks.append(kn); order.append(kn[0].name)
for p in range(2):
    xin = (0,0) if p==0 else X3
    xout = X3 if p==0 else (OUT,0)
    s=f"_{p}_kernel"
    add(ln("lna"+s, xin, XN))
    add(gemm("gqkv"+s, XN, 1, QKV, 3072, 1024, 192, "plain"))
    add(attn_kv("akv"+s, QKV, PARTB))
    add(attn_o("ao"+s, QKV, PARTB, O))
    add(gemm("gwo"+s, O, 3, X2, 1024, 1024, 64, "res", R1=xin, NS=6))
    add(ln("lnb"+s, X2, XP, XPP, Pad=HPAD))
    add(gemm("gw1"+s, XPP, 5, H, 1024, 1024, 64, "gelu", NS=6))
    add(gemm("gw2"+s, H, 6, X1, 1024, 1024, 64, "res", R1=XP, shift=True, NS=6))
    add(ln("lnc"+s, X1, X1N))
    add(gemm("gw3"+s, X1N, 7, G, 3584, 1024, 256, "gelu", NS=3))
    add(gemm("gw4"+s, G, 8, xout, 1024, 3584, 64, "res", R1=X1, R2=X2, NS=6))
open(sys.argv[1] if len(sys.argv)>1 else 'interleave_layers__linear_kernel_hedgehog__mixer_s_mlp__prompt.s','w').write(build(ks, order))
```

```python
from asmlib import K
import os
EXP=os.environ.get('EXP','')

M = 2048
BM = 128
BK = 64

def load_ptrs(k, bufs):
    idxs = sorted(set(b[1][0] for b in bufs))
    reg = {}
    for i, idx in enumerate(idxs):
        reg[idx] = 40 + 2*i
        k(f"s_load_dwordx2 s[{40+2*i}:{41+2*i}], s[0:1], {idx*8}")
    k("s_waitcnt lgkmcnt(0)")
    for q, (idx, off), nb in bufs:
        r = reg[idx]
        if off:
            k(f"s_add_u32 s{q}, s{r}, {off}")
            k(f"s_addc_u32 s{q+1}, s{r+1}, 0")
        else:
            k(f"s_mov_b32 s{q}, s{r}")
            k(f"s_mov_b32 s{q+1}, s{r+1}")
        k(f"s_mov_b32 s{q+2}, {nb}")
        k(f"s_mov_b32 s{q+3}, 0x00020000")

def gelu_code(k, x, t):
    k(f"v_mul_f32 v{t}, v{x}, v{x}")
    k(f"v_fma_f32 v{t}, v{t}, s36, 1.0")
    k(f"v_mul_f32 v{t}, v{t}, v{x}")
    k(f"v_mul_f32 v{t}, s37, v{t}")
    k(f"v_exp_f32 v{t}, v{t}")
    k(f"s_nop 0")
    k(f"v_add_f32 v{t}, 1.0, v{t}")
    k(f"v_rcp_f32 v{t}, v{t}")
    k(f"s_nop 0")
    k(f"v_mul_f32 v{x}, v{x}, v{t}")

def rne(k, x):
    k(f"v_cvt_pk_bf16_f32 v{x}, v{x}, v{x}")
    k(f"v_lshlrev_b32 v{x}, 16, v{x}")

def gemm(name, A, W, Out, N, Kd, BN, epi, R1=None, R2=None, shift=False, abytes=None, NS=4):
    WM, WN = 4, 2
    NBN = N // BN; GRID = 16*NBN
    TM = BM // WM // 32
    TN = BN // WN // 32
    U = BN // 8
    nIB = BN // 64
    swzB = (BN % 64 == 0)
    ASZ = BM*BK*2; BSZ = BK*BN*2
    ABASE = 0; BBASE = NS*ASZ
    k = K(name, GRID, 512, lds=NS*(ASZ + BSZ))
    NIT = Kd // BK
    done = "L_done_" + name
    k(f"s_cmp_ge_u32 s2, {GRID}")
    k(f"s_cbranch_scc1 {done}")
    a_off = A[1] - (2*Kd*2 if shift else 0)
    bufs = [(8, (A[0], a_off), (abytes or M*Kd*2) + (4*Kd*2 if shift else 0)), (12, (W, 0), Kd*N*2), (16, Out, M*N*2)]
    if R1: bufs.append((20, R1, M*N*2))
    if R2: bufs.append((24, R2, M*N*2))
    load_ptrs(k, bufs)
    k("s_mov_b32 s36, 0x3d372713")
    import struct, math
    c = -2*math.sqrt(2/math.pi)*math.log2(math.e)
    k(f"s_mov_b32 s37, 0x{struct.unpack('<I', struct.pack('<f', c))[0]:08x}")
    PB = {16: (4 if BN == 192 else 8), 14: 7}[NBN]
    GX = NBN // PB; PA = GRID // 8 // PB
    assert PA * (8 // GX) == 16
    mg = -(-65536 // PB)
    assert all((i*mg)>>16 == i//PB for i in range(GRID//8))
    k("s_and_b32 s3, s2, 7"); k("s_lshr_b32 s4, s2, 3")
    k(f"s_mul_i32 s5, s4, {mg}"); k("s_lshr_b32 s5, s5, 16")
    k(f"s_mul_i32 s6, s5, {PB}"); k("s_sub_u32 s6, s4, s6")
    k(f"s_lshr_b32 s7, s3, {GX.bit_length()-1}"); k(f"s_mul_i32 s7, s7, {PA}"); k("s_add_u32 s28, s7, s5")
    k(f"s_and_b32 s7, s3, {GX-1}"); k(f"s_mul_i32 s7, s7, {PB}"); k("s_add_u32 s29, s7, s6")
    k("v_lshrrev_b32 v1, 6, v0")
    k("s_nop 0")
    k("v_readfirstlane_b32 s30, v1")
    k("v_and_b32 v0, 63, v0")
    k("v_lshrrev_b32 v1, 3, v0")
    k("s_lshl_b32 s31, s30, 4")
    k(f"s_lshl_b32 s34, s28, 7")
    k("s_add_u32 s31, s31, s34")
    k("v_add_u32 v1, s31, v1")
    for j in range(2):
        k(f"v_add_u32 v6, {8*j}, v1")
        k("v_lshrrev_b32 v7, 1, v6")
        k("v_and_b32 v7, 7, v7")
        k("v_and_b32 v8, 7, v0")
        k("v_xor_b32 v7, v7, v8")
        k("v_lshlrev_b32 v7, 4, v7")
        k(f"s_mov_b32 s35, {Kd*2}")
        k(f"v_mul_lo_u32 v6, v6, s35")
        k(f"v_add_u32 v{2+j}, v6, v7")
    magic = -(-65536 // U)
    for L in range(64*U + 64):
        assert (L*magic) >> 16 == L // U
    k(f"s_mul_i32 s31, s30, {nIB*64}")
    k(f"s_mul_i32 s34, s29, {BN*2}")
    for j in range(nIB):
        k(f"v_add_u32 v6, s31, v0")
        k(f"v_add_u32 v6, {64*j}, v6")
        k(f"v_mul_u32_u24 v7, {magic}, v6")
        k(f"v_lshrrev_b32 v7, 16, v7")
        k(f"v_mul_u32_u24 v8, {U}, v7")
        k(f"v_sub_u32 v8, v6, v8")
        if swzB:
            k("v_lshlrev_b32 v9, 1, v7")
            k("v_and_b32 v9, 4, v9")
            k("v_xor_b32 v8, v8, v9")
        k("v_lshlrev_b32 v8, 4, v8")
        k(f"s_mov_b32 s35, {N*2}")
        k("v_mul_lo_u32 v7, v7, s35")
        k("v_add_u32 v7, v7, v8")
        k(f"v_add_u32 v{10+j}, s34, v7")
    if WN == 2:
        k("s_lshr_b32 s31, s30, 1"); k("s_and_b32 s34, s30, 1")
    else:
        k("s_mov_b32 s31, s30"); k("s_mov_b32 s34, 0")
    k(f"s_mul_i32 s38, s31, {TM*32}")
    k(f"s_mul_i32 s39, s34, {TN*32}")
    k("v_and_b32 v6, 31, v0")
    k("v_add_u32 v6, s38, v6")
    k("v_lshrrev_b32 v7, 1, v6")
    k("v_and_b32 v7, 7, v7")
    k("v_lshrrev_b32 v8, 5, v0")
    k("v_xor_b32 v7, v7, v8")
    k("v_lshlrev_b32 v7, 4, v7")
    k("v_lshlrev_b32 v6, 7, v6")
    k("v_add_u32 v6, v6, v7")
    for ks in range(4):
        k(f"v_xor_b32 v{20+ks}, {ks*32}, v6")
        k(f"v_add_u32 v{36+ks}, {4*ASZ}, v{20+ks}")
    k("v_lshrrev_b32 v6, 5, v0")
    k("v_lshlrev_b32 v6, 3, v6")
    k("v_bfe_u32 v7, v0, 2, 2")
    k("v_add_u32 v6, v6, v7")
    k("v_bfe_u32 v8, v0, 4, 1")
    k("v_lshlrev_b32 v8, 4, v8")
    k("v_and_b32 v9, 3, v0")
    k("v_lshlrev_b32 v9, 2, v9")
    k("v_add_u32 v8, v8, v9")
    k("v_add_u32 v8, s39, v8")
    nBaddr = TN if swzB else 1
    for t in range(nBaddr):
        k(f"v_add_u32 v9, {32*t}, v8")
        k("v_lshlrev_b32 v9, 1, v9")
        if swzB:
            k("v_lshlrev_b32 v18, 5, v7")
            k("v_and_b32 v18, 64, v18")
            k("v_xor_b32 v9, v9, v18")
        k(f"v_mul_u32_u24 v19, {BN*2}, v6")
        k(f"v_add_u32 v{24+t}, v19, v9")
        k(f"v_add_u32 v{24+t}, {BBASE}, v{24+t}")
        for sp in range(1, (NS+1)//2):
            k(f"v_add_u32 v{24+4*sp+t}, {2*sp*BSZ}, v{24+t}")
    ACC = 40
    nacc = TM*TN*16
    for i in range(nacc):
        k(f"v_mov_b32 v{ACC+i}, 0")
    FR = ACC + nacc
    FS = (TM+TN)*4
    NV = FR + 2*FS + 8
    TMP = FR + 2*FS
    k(f"s_lshl_b32 s40, s30, 11")
    k(f"s_mul_i32 s41, s30, {nIB*1024}")
    k(f"s_add_u32 s41, s41, {BBASE}")
    k("s_mov_b32 s32, 0"); k("s_mov_b32 s33, 0")
    def shift_soff(it):
        g = (it*BK)//256
        return {0: -1, 1: 1, 2: -2, 3: 2}[g]
    def dma(stage):
        for j in range(2):
            k(f"s_add_u32 m0, s40, {stage*ASZ + j*1024}")
            k("s_nop 0")
            k(f"buffer_load_dwordx4 v{2+j}, s[8:11], s32 offen lds")
        for j in range(nIB):
            k(f"s_add_u32 m0, s41, {stage*BSZ + j*1024}")
            k("s_nop 0")
            k(f"buffer_load_dwordx4 v{10+j}, s[12:15], s33 offen lds")
    ROT = os.environ.get('ROT','0') == '1'
    if NIT == 16: k("s_and_b32 s42, s4, 15")
    else: k("s_and_b32 s42, s4, 7"); k("s_mul_i32 s42, s42, 7")
    if not ROT: k("s_mov_b32 s42, 0")
    def soff():
        k("s_add_u32 s35, s35, s42")
        k(f"s_sub_u32 s34, s35, {NIT}")
        k(f"s_cmp_ge_u32 s35, {NIT}")
        k("s_cselect_b32 s35, s34, s35")
        k(f"s_mul_i32 s33, s35, {BK*N*2}")
        k(f"s_lshl_b32 s32, s35, 7")
        if shift:
            k(f"s_lshr_b32 s34, s35, 2")
            k("s_mov_b32 s39, 0x04000301")
            k("s_lshl_b32 s34, s34, 3")
            k("s_lshr_b32 s39, s39, s34")
            k("s_and_b32 s39, s39, 0xff")
            k(f"s_mul_i32 s39, s39, {Kd*2}")
            k("s_add_u32 s32, s32, s39")
    for st in range(NS-1):
        k(f"s_mov_b32 s35, {st}")
        soff()
        dma(st)
    def reads(stage, ks, fs):
        b = FR + fs*FS
        n = 0
        if 'nords' in EXP: return
        for i in range(TM):
            k(f"ds_read_b128 v[{b+4*i}:{b+4*i+3}], v{(20 if stage < 4 else 36)+ks} offset:{ABASE + (stage%4)*ASZ + i*4096}")
            n += 1
        for t in range(TN):
            for h in range(2):
                off = (stage%2)*BSZ + (16*ks + 4*h)*BN*2 + (0 if swzB else t*64)
                a = 24 + 4*(stage//2) + (t if swzB else 0)
                r = b + 4*TM + 4*t + 2*h
                k(f"ds_read_b64_tr_b16 v[{r}:{r+1}], v{a} offset:{off}")
                n += 1
        return n
    def mfmas(fs):
        b = FR + fs*FS
        if 'nomfma' in EXP: return
        for i in range(TM):
            for t in range(TN):
                a = ACC + (i*TN + t)*16
                k(f"v_mfma_f32_32x32x16_bf16 v[{a}:{a+15}], v[{b+4*TM+4*t}:{b+4*TM+4*t+3}], v[{b+4*i}:{b+4*i+3}], v[{a}:{a+15}]")
    nrd = TM + 2*TN
    k("s_mov_b32 s31, 0")
    k(f"s_waitcnt vmcnt({(NS-2)*(2+nIB)})")
    k("s_barrier")
    reads(0, 0, 0)
    loop = "L_loop_" + name
    k.label(loop)
    nper = 2 + nIB
    endl = "L_lend_" + name
    for stage in range(NS):
        if NIT % NS:
            k(f"s_cmp_ge_u32 s31, {NIT - stage}")
            k(f"s_cbranch_scc1 {endl}")
        tail = k.newlabel("tail"); join = k.newlabel("join")
        k(f"s_cmp_ge_u32 s31, {NIT - stage - (NS-1)}")
        k(f"s_cbranch_scc1 {tail}")
        k(f"s_waitcnt vmcnt({(NS-3)*nper})")
        k("s_barrier")
        k(f"s_add_u32 s35, s31, {stage+NS-1}")
        soff()
        if 'nodma' not in EXP: dma((stage + NS - 1) % NS)
        k(f"s_branch {join}")
        k.label(tail)
        k("s_waitcnt vmcnt(0)")
        k("s_barrier")
        k.label(join)
        for ks in range(4):
            if ks < 3:
                reads(stage, ks+1, (ks+1) & 1)
            else:
                reads((stage+1) % NS, 0, 0)
            k(f"s_waitcnt lgkmcnt({nrd})")
            mfmas(ks & 1)
    k(f"s_add_u32 s31, s31, {NS}")
    k(f"s_cmp_lt_u32 s31, {NIT}")
    k(f"s_cbranch_scc1 {loop}")
    k.label(endl)
    k("s_nop 15"); k("s_nop 7")
    if WN == 2:
        k("s_lshr_b32 s31, s30, 1"); k("s_and_b32 s34, s30, 1")
    else:
        k("s_mov_b32 s31, s30"); k("s_mov_b32 s34, 0")
    k(f"s_mul_i32 s38, s31, {TM*32}")
    k(f"s_mul_i32 s39, s34, {TN*32}")
    k(f"s_lshl_b32 s31, s28, 7"); k("s_add_u32 s38, s38, s31")
    k(f"s_mul_i32 s31, s29, {BN}"); k("s_add_u32 s39, s39, s31")
    assert TM == 1
    T = TMP
    RS = TN*64 + 16
    CH = TN*4
    NRI = 32*CH // 64
    k("s_barrier")
    k(f"s_mul_i32 s32, s30, {32*RS}")
    k("v_and_b32 v1, 31, v0"); k(f"v_mul_u32_u24 v1, {RS}, v1")
    k("v_lshrrev_b32 v2, 5, v0"); k("v_lshlrev_b32 v2, 3, v2"); k("v_add_u32 v1, v1, v2"); k("v_add_u32 v1, s32, v1")
    for t in range(TN):
        a_ = ACC + t*16
        for q in range(4):
            x = a_ + 4*q
            if epi == "gelu":
                for e in range(4): rne(k, x+e)
                for e in range(4): gelu_code(k, x+e, T+4)
            k(f"v_cvt_pk_bf16_f32 v{x}, v{x}, v{x+1}")
            k(f"v_cvt_pk_bf16_f32 v{x+1}, v{x+2}, v{x+3}")
            k(f"ds_write_b64 v1, v[{x}:{x+1}] offset:{(32*t+8*q)*2}")
    mgc = -(-65536 // CH)
    assert all((L*mgc)>>16 == L//CH for L in range(32*CH))
    k(f"s_mov_b32 s35, {N*2}")
    k("s_lshl_b32 s39, s39, 1")
    for i in range(NRI):
        k(f"v_add_u32 v2, {64*i}, v0")
        k(f"v_mul_u32_u24 v3, {mgc}, v2"); k("v_lshrrev_b32 v3, 16, v3")
        k(f"v_mul_u32_u24 v4, {CH}, v3"); k("v_sub_u32 v4, v2, v4"); k("v_lshlrev_b32 v4, 4, v4")
        k(f"v_mul_u32_u24 v5, {RS}, v3"); k("v_add_u32 v5, v5, v4"); k(f"v_add_u32 v{8+i}, s32, v5")
        k("v_add_u32 v3, s38, v3"); k("v_mul_lo_u32 v3, v3, s35"); k("v_add_u32 v3, v3, v4"); k(f"v_add_u32 v{16+i}, s39, v3")
    k("s_waitcnt lgkmcnt(0)")
    D0 = ACC
    for i in range(NRI):
        k(f"ds_read_b128 v[{D0+4*i}:{D0+4*i+3}], v{8+i}")
        if R1: k(f"buffer_load_dwordx4 v[{D0+4*NRI+4*i}:{D0+4*NRI+4*i+3}], v{16+i}, s[20:23], 0 offen")
        if R2: k(f"buffer_load_dwordx4 v[{D0+8*NRI+4*i}:{D0+8*NRI+4*i+3}], v{16+i}, s[24:27], 0 offen")
    k("s_waitcnt lgkmcnt(0)")
    if R1: k("s_waitcnt vmcnt(0)")
    for i in range(NRI):
        if R1:
            for e in range(4):
                d = D0+4*i+e; r1 = D0+4*NRI+4*i+e; r2 = D0+8*NRI+4*i+e
                k(f"v_lshlrev_b32 v{T}, 16, v{d}"); k(f"v_and_b32 v{T+1}, 0xffff0000, v{d}")
                k(f"v_lshlrev_b32 v{T+2}, 16, v{r1}"); k(f"v_and_b32 v{T+3}, 0xffff0000, v{r1}")
                k(f"v_add_f32 v{T}, v{T}, v{T+2}"); k(f"v_add_f32 v{T+1}, v{T+1}, v{T+3}")
                k(f"v_cvt_pk_bf16_f32 v{d}, v{T}, v{T+1}")
                if R2:
                    k(f"v_lshlrev_b32 v{T}, 16, v{d}"); k(f"v_and_b32 v{T+1}, 0xffff0000, v{d}")
                    k(f"v_lshlrev_b32 v{T+2}, 16, v{r2}"); k(f"v_and_b32 v{T+3}, 0xffff0000, v{r2}")
                    k(f"v_add_f32 v{T}, v{T}, v{T+2}"); k(f"v_add_f32 v{T+1}, v{T+1}, v{T+3}")
                    k(f"v_cvt_pk_bf16_f32 v{d}, v{T}, v{T+1}")
        k(f"buffer_store_dwordx4 v[{D0+4*i}:{D0+4*i+3}], v{16+i}, s[16:19], 0 offen")
    k.label(done)
    return k, NV
```
